```python
import torch

def _softmax(x, axis=-1):
    return torch.softmax(x, dim=axis)

def _gelu(x):
    return torch.nn.functional.gelu(x, approximate='tanh')

def _silu(x):
    return torch.nn.functional.silu(x)

def _sigmoid(x):
    return torch.sigmoid(x)

def _layernorm(x, axis=-1, eps=1e-05):
    m = x.mean(dim=axis, keepdim=True)
    v = x.var(dim=axis, keepdim=True, unbiased=False)
    return (x - m) / torch.sqrt(v + eps)

def _scatter_add(tgt, idx, src, axis=0):
    return tgt.clone().index_add_(axis, idx, src)

def _segment_sum(src, seg, n):
    out = torch.zeros((n,) + src.shape[1:], dtype=src.dtype)
    return out.index_add_(0, seg, src)

def _pad(x, pw):
    flat = tuple((v for pair in reversed(pw) for v in pair))
    return torch.nn.functional.pad(x, flat)
kernel_name = 'concat_heads__mha_block__memory_aug_recurrent_mem_tr__prompt'

def setup_inputs():

    _w = lambda a: (lambda t: t.to(torch.bfloat16) if t.is_floating_point() else t)(torch.as_tensor(a))

    def _A_setup():
        B, S, D, H = (1, 2048, 512, 32)
        return {'x': _w((lambda *s: torch.randn(*s, dtype=torch.bfloat16) * 0.2)(B, S, D)), 'wqkv': _w((lambda *s: torch.randn(*s, dtype=torch.bfloat16) * 0.2)(D, 3 * D)), 'wo': _w((lambda *s: torch.randn(*s, dtype=torch.bfloat16) * 0.05)(D, D))}
    _A_in = _A_setup()

    def _B_setup():
        B, S, Dm = (1, 2048, 512)
        H, Dh = (32, 128)
        M, seg = (8, 32)
        seg = min(seg, S)
        S = S // seg * seg
        return {'x': _w((lambda *s: torch.randn(*s, dtype=torch.bfloat16) * 0.05)(B, S, Dm)), 'mem0': _w((lambda *s: torch.randn(*s, dtype=torch.bfloat16) * 0.8)(B, M, Dm)), 'Wq': _w((lambda *s: torch.randn(*s, dtype=torch.bfloat16) * 1.6)(Dm, H, Dh) * Dm ** (-0.5)), 'Wk': _w((lambda *s: torch.randn(*s, dtype=torch.bfloat16) * 1.6)(Dm, H, Dh) * Dm ** (-0.5)), 'Wv': _w((lambda *s: torch.randn(*s, dtype=torch.bfloat16) * 0.8)(Dm, H, Dh) * Dm ** (-0.5)), 'Wo': _w((lambda *s: torch.randn(*s, dtype=torch.bfloat16) * 0.8)(H, Dh, Dm) * (H * Dh) ** (-0.5)), 'seg_len': seg}
    _B_in = _B_setup()
    return {'A_x': _A_in['x'], 'A_wqkv': _A_in['wqkv'], 'A_wo': _A_in['wo'], 'B_x': _B_in['x'], 'B_mem0': _B_in['mem0'], 'B_Wq': _B_in['Wq'], 'B_Wk': _B_in['Wk'], 'B_Wv': _B_in['Wv'], 'B_Wo': _B_in['Wo'], 'B_seg_len': _B_in['seg_len']}

def reference(A_x, A_wqkv, A_wo, B_x, B_mem0, B_Wq, B_Wk, B_Wv, B_Wo, B_seg_len):

    def _A_ref(x, wqkv, wo):
        B, S, D = x.shape
        H = 32
        Dh = D // H
        qkv = (lambda x, *d: x.permute(*d))((x @ wqkv).reshape(B, S, 3, H, Dh), 2, 0, 3, 1, 4)
        q, k, v = (qkv[0], qkv[1], qkv[2])
        scores = torch.einsum('bhqd,bhkd->bhqk', q, k) * Dh ** (-0.5)
        p = _softmax(scores, axis=-1)
        o = torch.einsum('bhqk,bhkd->bhqd', p, v)
        return (lambda x, *d: x.permute(*d))(o, 0, 2, 1, 3).reshape(B, S, D) @ wo

    def _B_ref(x, mem0, Wq, Wk, Wv, Wo, seg_len):
        B, S, Dm = x.shape
        H, Dh = (Wq.shape[1], Wq.shape[2])
        M = mem0.shape[1]
        scale = Dh ** (-0.5)
        n_seg = S // seg_len
        L = M + seg_len
        idx = torch.arange(L)
        mask = (idx[:, None] < M) | (idx[:, None] >= idx[None, :])
        mem = mem0
        outs = []
        for s in range(n_seg):
            xs = x[:, s * seg_len:(s + 1) * seg_len, :].clone()
            h = torch.concatenate([mem, xs], axis=1)
            q = torch.einsum('btd,dhe->bhte', h, Wq)
            k = torch.einsum('btd,dhe->bhte', h, Wk)
            v = torch.einsum('btd,dhe->bhte', h, Wv)
            scores = torch.einsum('bhqe,bhke->bhqk', q, k) * scale
            scores = torch.where(mask[None, None], scores, -1000000000.0)
            p = _softmax(scores, axis=-1)
            o = torch.einsum('bhqk,bhke->bhqe', p, v)
            o = torch.einsum('bhte,hed->btd', o, Wo)
            mem = o[:, :M, :].clone()
            outs.append(o[:, M:, :])
        return torch.concatenate(outs, axis=1)
    a = _A_ref(A_x, A_wqkv, A_wo)
    b = _B_ref(B_x, B_mem0, B_Wq, B_Wk, B_Wv, B_Wo, B_seg_len)
    return torch.concatenate([a, b], axis=-1)
```

```python
from common import *

S_WS   = 4
S_H    = 16
S_WAVE = 17
S_STEP = 18
S_T    = 19
S_WQ, S_WK, S_WV, S_WO = 20, 24, 28, 32
S_HOFF = 36
S_HWO  = 37
S_KV   = 38
S_PUB  = 39
S_PST  = 40
S_PST1 = 41
S_PLD  = 42
S_PLD1 = 43
S_MST  = 44
S_MLD  = 45
S_PPO  = 46
S_MPO  = 47
S_BUD  = 48
S_C    = 49
S_EXO  = 50
S_EXM  = 52
S_R1   = 54
S_R2   = 55
S_T0   = 56
S_T1   = 58
S_LO   = 60
S_RNG  = 61
S_XCC  = 3
S_F1   = 96
S_PTR  = 64
P_AX, P_WQKV, P_AWO, P_BX, P_MEM0, P_WQ, P_WK, P_WV, P_WO, P_SEG, P_OUT, P_DBG, P_WSP = [S_PTR + 2*i for i in range(13)]

MEM, WA, SB, AQ, AK, AV = 0, 32, 64, 80, 88, 96
VX, KX = WA + 16, WA + 24
PMA, VZ, PMB, KVM, POIS = 104, 105, 106, 108, 112
IDX, L16, ASB, AQW, AQR, APS, AMS, AKX, T0, T1, FLG = 116, 117, 118, 119, 120, 121, 122, 123, 124, 125, 126
L_MEM, L_XS, L_QK, L_O = 0x0000, 0x2000, 0x6000, 0x7000
L_ZERO, L_ONES, L_ROLE, L_SEL, L_W = 0x7800, 0x7810, 0x7840, 0x7C00, 0x8000
L_P = L_MEM

STREAM = [('Q',0), ('K',0), ('V',1), ('Q',6), ('K',5), ('V',4)]

def homes():
    order = []
    for m in 'QKV':
        for s in range(8):
            if (m, s) not in STREAM: order.append((m, s))
    order += [('W', 0, 0), ('W', 1, 0), ('W', 0, 1)]
    home = {}; pos = 0
    for u in order:
        n = 32 if u[0] == 'W' else 16
        home[u] = ('a', pos) if pos < 256 else ('v', 128 + pos - 256)
        pos += n
    assert pos == 384
    return order, home
ORDER, HOME = homes()

def smf(acc, a, b):
    return f'v_smfmac_f32_16x16x64_bf16 {vr(acc,4)}, {vr(a,4)}, {vr(b[1],8,b[0])}, v{IDX}'
def mf32(d, a, b, c):
    return f'v_mfma_f32_16x16x32_bf16 {vr(d,4)}, {vr(a,4)}, {vr(b,4)}, ' + ('0' if c is None else vr(c,4))
def mf16(d, a, b, c):
    return f'v_mfma_f32_16x16x16_bf16 {vr(d,4)}, {vr(a,2)}, {vr(b,2)}, ' + ('0' if c is None else vr(c,4))
def dsr(d, addr, off): return f'ds_read_b128 {vr(d,4)}, v{addr} offset:{off}'

def srd(A, s, ptr, size):
    A(f's_mov_b32 s{s}, s{ptr}\ns_and_b32 s{s+1}, s{ptr+1}, 0xffff\ns_mov_b32 s{s+2}, {size:#x}\ns_mov_b32 s{s+3}, 0x20000')

def chunk(w, s): return (2*w + s) % 8

def load_weights(A, w, after_first_wait):
    VQ, VW, ATQ, ATW, TMP = 64, 65, 66, 67, 0
    base = L_W * (1 + w)
    A(f'''
    v_lshrrev_b32 v68, 4, v{L16}              ; lane
    v_lshrrev_b32 v69, 5, v68                 ; l>>5
    v_lshlrev_b32 v{VQ}, 4, v69               ; 16*(gb>>1)
    v_bfe_u32 v70, v68, 4, 1
    v_lshl_add_u32 v{VQ}, v70, 2, v{VQ}       ; +4*(gb&1)
    v_bfe_u32 v70, v68, 3, 1
    v_lshl_add_u32 v{VQ}, v70, 3, v{VQ}       ; +8*(r>>1)
    v_bfe_u32 v70, v68, 2, 1
    v_add_u32 v{VQ}, v70, v{VQ}               ; +(r&1)
    v_lshlrev_b32 v{VQ}, 13, v{VQ}
    v_and_b32 v70, 3, v68
    v_lshl_add_u32 v{VQ}, v70, 4, v{VQ}
    v_lshlrev_b32 v{VW}, 4, v69               ; 16*(l>>5)
    v_bfe_u32 v71, v68, 4, 1
    v_lshl_add_u32 v{VW}, v71, 5, v{VW}       ; +32*(r>>1), r=(l>>3)&3
    v_bfe_u32 v71, v68, 3, 1
    v_add_u32 v{VW}, v71, v{VW}
    v_lshlrev_b32 v{VW}, 10, v{VW}
    v_and_b32 v71, 7, v68
    v_lshl_add_u32 v{VW}, v71, 4, v{VW}
    v_lshrrev_b32 v69, 2, v68
    v_lshlrev_b32 v{ATQ}, 6, v69
    v_lshl_add_u32 v{ATQ}, v70, 3, v{ATQ}
    v_add_u32 v{ATQ}, {base}, v{ATQ}
    v_lshlrev_b32 v{ATW}, 7, v69
    v_lshl_add_u32 v{ATW}, v70, 5, v{ATW}
    v_add_u32 v{ATW}, {base}, v{ATW}
    ''')
    units = list(ORDER) + list(STREAM) + [('W', 1, 1)]
    pos = []; p = 0
    for u in units:
        pos.append(p); p += 2 if u[0] == 'W' else 1
    assert p == 32
    def size(u): return 2 if u[0] == 'W' else 1
    def issue(k):
        u = units[k]; slot = pos[k] % 8
        if u[0] == 'W':
            assert slot % 2 == 0
            for j in range(8):
                q = j >> 1
                e = 64*u[1] + 8*(q >> 1) + 2*(q & 1) + 4*(j & 1)
                A(f's_mov_b32 m0, {base + slot*4096 + j*1024}\ns_add_u32 s{S_T}, s{S_HWO}, {e*1024 + w*256 + u[2]*128}')
                A(f'buffer_load_dwordx4 v{VW}, {sr(S_WO,4)}, s{S_T} offen lds')
        else:
            s = {'Q': S_WQ, 'K': S_WK, 'V': S_WV}[u[0]]
            for q in range(4):
                d = 64*chunk(w, u[1]) + 32*(q >> 1) + 2*(q & 1)
                A(f's_mov_b32 m0, {base + slot*4096 + q*1024}\ns_add_u32 s{S_T}, s{S_HOFF}, {d*8192 + w*64}')
                A(f'buffer_load_dwordx4 v{VQ}, {sr(s,4)}, s{S_T} offen lds')
    nxt = 0
    while pos[nxt] + size(units[nxt]) <= 8:
        issue(nxt); nxt += 1
    for k, u in enumerate(units):
        issued = pos[nxt] if nxt < len(units) else 32
        A(f's_waitcnt vmcnt({4*(issued - pos[k] - size(u))})')
        if k == 0: after_first_wait()
        slot = pos[k] % 8
        kind, b = HOME.get(u, ('v', TMP))
        if u[0] == 'W':
            for tt in range(4):
                for q in range(4):
                    A(f'ds_read_b64_tr_b16 {vr(b + 8*tt + 2*q, 2, kind)}, v{ATW} offset:{slot*4096 + q*2048 + tt*8}')
        else:
            for t in range(2):
                for q in range(4):
                    A(f'ds_read_b64_tr_b16 {vr(b + 8*t + 2*q, 2, kind)}, v{ATQ} offset:{slot*4096 + q*1024 + 32*t}')
        A('s_waitcnt lgkmcnt(0)')
        if u not in HOME:
            for i in range(4*size(u)):
                A(f'ds_write_b128 v{ASB}, {vr(TMP + 4*i, 4)} offset:{slot*4096 + i*1024}')
        freed = pos[k] + size(u)
        while nxt < len(units) and pos[nxt] + size(units[nxt]) <= freed + 8:
            issue(nxt); nxt += 1

def step_offsets(A, w, kvs=16384):
    A(f"""
    s_and_b32 s{S_T}, s{S_STEP}, 3
    s_lshl_b32 s{S_T}, s{S_T}, 18
    s_add_u32 s{S_PST}, s{S_T}, s{S_HOFF}
    s_add_u32 s{S_PST}, s{S_PST}, {WS_P + 8*w*8192}
    s_add_u32 s{S_PST1}, s{S_PST}, {4*8192}
    s_lshl_b32 s{S_PLD}, s{S_H}, 13
    s_add_u32 s{S_PLD}, s{S_PLD}, s{S_T}
    s_add_u32 s{S_PLD}, s{S_PLD}, {WS_P}
    s_xor_b32 s{S_PPO}, s{S_PLD}, {(2 << 18) + w*2048}
    """)
    if w == 0: A(f's_add_u32 s{S_PLD1}, s{S_PLD}, 4096')
    A(f"""
    s_add_u32 s{S_T}, s{S_STEP}, 1
    s_and_b32 s{S_T}, s{S_T}, 3
    s_lshl_b32 s{S_T}, s{S_T}, 13
    s_add_u32 s{S_MLD}, s{S_T}, {WS_M + 2048*w}
    """)
    if w == 0: A(f's_add_u32 s{S_MST}, s{S_MLD}, s{S_HOFF}')
    if w == 3:
        A(f"""
        s_add_u32 s{S_T}, s{S_T}, 8192
        s_and_b32 s{S_T}, s{S_T}, {3 << 13}
        s_add_u32 s{S_MPO}, s{S_T}, s{S_HOFF}
        s_add_u32 s{S_MPO}, s{S_MPO}, {WS_M}
        """)
    A(f"""
    s_lshl_b32 s{S_PUB}, s{S_H}, 6
    s_add_u32 s{S_PUB}, s{S_PUB}, s{S_STEP}
    s_lshl_b32 s{S_PUB}, s{S_PUB}, 12
    s_add_u32 s{S_PUB}, s{S_PUB}, {WS_KVM + 1024*w}
    s_cmp_lt_u32 s{S_STEP}, 62
    s_cselect_b32 s{S_T}, {kvs}, 0
    s_add_u32 s{S_KV}, s{S_KV}, s{S_T}
    """)

def lines(fn, *a):
    B = Asm(); fn(B, *a); return [l.strip() for l in B.lines]

def slot_order(xs):
    rank = lambda x: 0 if x.startswith('s_') else (1 if x.startswith(('ds_', 'buffer_', 'global_')) else 2)
    return sorted(xs, key=rank)

def chain_wave(A, w, opt):
    st = opt.get('st', '')
    ws = sr(S_WS, 4)
    nohop = opt.get('nohop')
    Lstep, Lbail, Lslow, Lback, Lfin, Lre2 = [f'C{w}_{n}' for n in ('step','bail','slow','back','fin','re2')]
    A(f"""
    v_and_b32 v68, 63, v0
    v_lshlrev_b32 v{L16}, 4, v68
    v_add_u32 v{ASB}, {L_W*(1+w)}, v{L16}
    v_lshrrev_b32 v69, 4, v68                  ; g
    v_and_b32 v70, 15, v68                     ; n
    v_bfe_u32 v71, v68, 1, 1                   ; u
    v_mul_u32_u24 v{IDX}, 0xaaaa, v71
    v_add_u32 v{IDX}, 0x4444, v{IDX}
    v_lshlrev_b32 v{AQW}, 7, v69
    v_lshl_add_u32 v{AQW}, v70, 2, v{AQW}
    v_add_u32 v{AQW}, {L_QK + w*1024}, v{AQW}
    v_lshrrev_b32 v64, 2, v70                  ; n>>2
    v_and_b32 v65, 1, v70                      ; n&1
    v_lshl_add_u32 v66, v64, 1, v65            ; m
    v_lshlrev_b32 v{AQR}, 6, v66
    v_lshl_add_u32 v{AQR}, v69, 4, v{AQR}
    v_lshl_add_u32 v{AQR}, v71, 10, v{AQR}
    v_add_u32 v{AQR}, {L_QK}, v{AQR}
    v_lshlrev_b32 v{APS}, 13, v64
    v_lshl_add_u32 v{APS}, v69, 6, v{APS}
    v_and_b32 v67, 3, v70
    v_lshl_add_u32 v{APS}, v67, 4, v{APS}
    v_lshlrev_b32 v{AMS}, 6, v69
    v_lshl_add_u32 v{AMS}, v64, 5, v{AMS}
    v_lshl_add_u32 v{AMS}, v65, 4, v{AMS}
    v_lshl_add_u32 v{AMS}, v71, 3, v{AMS}
    v_and_b32 v{AKX}, 0x3d0, v{L16}            ; g*256 + (4g'+rr)*16
    v_lshl_add_u32 v{AKX}, v71, 10, v{AKX}
    v_lshlrev_b32 v{T0}, 10, v66
    v_lshl_add_u32 v{T0}, v69, 5, v{T0}
    v_lshl_add_u32 v{T0}, v71, 4, v{T0}
    """)
    for r in (PMA, VZ, PMB, PMB+1, KVM, KVM+1, KVM+2, KVM+3): A(f'v_mov_b32 v{r}, 0')
    for i in range(4): A(f'v_mov_b32 v{POIS+i}, -1')
    A(f"""
    s_mov_b32 s{S_EXO}, 0x33333333
    s_mov_b32 s{S_EXO+1}, s{S_EXO}
    s_mov_b32 s{S_EXM}, 0x00ff00ff
    s_mov_b32 s{S_EXM+1}, s{S_EXM}
    s_mov_b32 s{S_C}, 0x3e0293ee               ; 128^-0.5 * log2(e)
    s_mov_b32 s{S_LO}, 0x30800000              ; 2^-30
    s_mov_b32 s{S_RNG}, {opt.get('rng', 0x1e000000):#x}             ; 60 binades
    s_mov_b32 s{S_BUD}, 400000
    s_mov_b32 s{S_R1}, 0
    s_mov_b32 s{S_R2}, 0
    s_lshl_b32 s{S_HOFF}, s{S_H}, 8
    s_lshl_b32 s{S_HWO}, s{S_H}, 17
    """)
    if w == 0:
        A(f"""
        v_lshrrev_b32 v64, 1, v70
        v_mov_b32 v66, 0x3f80
        v_lshlrev_b32 v65, 4, v65
        v_lshlrev_b32 v66, v65, v66
        """)
        for d in range(4):
            A(f'v_cmp_eq_u32 vcc, {d}, v64\nv_cndmask_b32 v{44+d}, v{VZ}, v66, vcc')
        A(f'ds_write_b128 v{L16}, v[44:47] offset:{L_SEL}')
        A(f'ds_write_b128 v{VZ}, v[{KVM}:{KVM+3}] offset:{L_ZERO}')
        for d in range(4): A(f'v_mov_b32 v{48+d}, 0x3f803f80')
        A(f'ds_write_b128 v{VZ}, v[48:51] offset:{L_ONES}')
    A(f's_lshl_b32 s{S_T}, s{S_H}, 13\ns_add_u32 s{S_T}, s{S_T}, {WS_P + (w << 18)}')
    for i in range(8):
        if i == 4: A(f's_add_u32 s{S_T}, s{S_T}, 4096')
        A(f'buffer_store_dwordx4 {vr(POIS,4)}, v{L16}, {ws}, s{S_T} offen offset:{(i % 4)*1024} sc1')
    A(f's_add_u32 s{S_T}, s{S_HOFF}, {WS_M + (w << 13)}\ns_mov_b64 exec, 0xffff')
    A(f'buffer_store_dwordx4 {vr(POIS,4)}, v{L16}, {ws}, s{S_T} offen sc1\ns_mov_b64 exec, -1')
    for s, p in ((S_WQ, P_WQ), (S_WK, P_WK), (S_WV, P_WV), (S_WO, P_WO)):
        srd(A, s, p, 0x400000)
    def arrive():
        A('s_waitcnt lgkmcnt(0)\ns_barrier')
        if w == 0:
            A(f"""
            s_add_u32 s{S_T}, s{S_XCC}, 1
            v_mov_b32 v44, s{S_T}
            s_lshl_b32 s{S_T}, s{S_H}, 2
            v_mov_b32 v45, s{S_T}
            s_mov_b64 exec, 1
            global_store_dword v45, v44, {sr(P_DBG,2)} offset:{DBG_MEMB} sc1
            s_mov_b64 exec, -1""")
    load_weights(A, w, arrive)
    dma = [f'buffer_load_dwordx4 v{L16}, {ws}, s{S_KV} offen offset:{i*1024} sc1 lds' for i in range(4)]
    A(f"""
    s_lshl_b32 s{S_T}, s{S_H}, 20
    s_add_u32 s{S_KV}, s{S_T}, {WS_KV + w*4096}
    s_mov_b32 m0, {L_XS + 4096*w}
    s_mov_b32 s{S_PUB}, {WS_DUMMY + 1024*w}
    s_mov_b32 s{S_STEP}, 0
    """)
    def spin(name, load, cond):
        L = f'C{w}_{name}'
        A(f"""
        {L}:
        {load}
        s_sub_u32 s{S_BUD}, s{S_BUD}, 1
        s_cbranch_scc1 C{w}_bail
        s_waitcnt vmcnt(0)
        {cond}
        s_cbranch_vccnz {L}
        """)
    flags = not opt.get('noflags')
    A(f's_add_u32 s{S_F1}, s{S_HOFF}, {WS_F1}')
    if flags:
        spin('init', f'global_load_dword v44, v{VZ}, {sr(P_DBG,2)} offset:{DBG_INIT} sc1', 'v_cmp_gt_u32 vcc, 0x100, v44')
        A(f'v_bfe_u32 v45, v{L16}, 4, 1\nv_lshlrev_b32 v45, 2, v45')
        spin('f01', f'buffer_load_dword v44, v45, {ws}, s{S_F1} offen sc1', 'v_cmp_ne_u32 vcc, 1, v44')
    A(f's_add_u32 s{S_F1}, s{S_F1}, 8')
    for x in dma: A(x)
    A(f's_add_u32 s{S_KV}, s{S_KV}, 16384')
    A(f'v_bfe_u32 v45, v{L16}, 4, 5\nv_min_u32 v45, {opt.get("solo", 32) - 1}, v45\nv_lshlrev_b32 v45, 2, v45')
    spin('rdv', f'global_load_dword v44, v45, {sr(P_DBG,2)} offset:{DBG_MEMB} sc1', 'v_cmp_eq_u32 vcc, 0, v44')
    A(f"""
    s_add_u32 s{S_T}, s{S_XCC}, 1
    v_cmp_ne_u32 {sr(S_T1,2)}, s{S_T}, v44
    s_waitcnt lgkmcnt(0)
    s_barrier
    """)
    srd(A, 8, P_MEM0, 8192)
    for s in range(2):
        A(f'buffer_load_dwordx4 {vr(MEM+4*s,4)}, v{T0}, s[8:11], 0 offen offset:{128*chunk(w,s)}')
    A(f's_mov_b32 s{S_MLD}, {WS_DUMMY}')
    pre_q = [dsr(SB+4*i, ASB, 0*4096 + i*1024) for i in range(4)]
    pre_k = [dsr(MEM+16+4*i, ASB, 1*4096 + i*1024) for i in range(4)]
    kxa = L_XS + (w >> 1)*4096 + (w & 1)*32
    pre_x = [dsr(KX, AKX, kxa), dsr(KX+4, AKX, kxa + 2048), dsr(VX, L16, L_XS + 8192 + 2*w*1024), dsr(VX+4, L16, L_XS + 8192 + (2*w+1)*1024)]
    zero_a = [f'v_mov_b32 v{AQ+i}, 0' for i in list(range(16, 24)) + list(range(16))]
    zero_w = []
    for x in pre_q + pre_k + pre_x + zero_a + zero_w: A(x)
    A('s_waitcnt vmcnt(0)')
    for i in range(8): A(f'v_min_u32 v{MEM+i}, -2, v{MEM+i}')
    if opt.get('stamp'): A(f's_memtime {sr(S_T0,2)}')
    ph = opt.get('phases')
    if ph:
        for i in range(5): A(f's_mov_b32 s{90+i}, 0')
    stamps = opt.get('at', {})
    def stamp(name):
        return [f's_memtime s[{20+2*stamps[name]}:{21+2*stamps[name]}]'] if ph and name in stamps else []

    A(f's_cmp_lg_u64 {sr(S_T1,2)}, 0\ns_cbranch_scc1 D{w}_step')
    env = dict(dma=dma, pre_q=pre_q, pre_k=pre_k, pre_x=pre_x, zero_a=zero_a, zero_w=zero_w, stamp=stamp, stamps=stamps, flags=flags)
    chain_loop(A, w, opt, 'C', opt.get('st', ''), **env)
    chain_loop(A, w, opt, 'D', 'sc1', **env)

def chain_loop(A, w, opt, pf, st, dma, pre_q, pre_k, pre_x, zero_a, zero_w, stamp, stamps, flags):
    ws = sr(S_WS, 4)
    nohop = opt.get('nohop'); ph = opt.get('phases')
    Lstep, Lbail, Lslow, Lback, Lfin, Lre2 = [f'{pf}{w}_{n}' for n in ('step','bail','slow','back','fin','re2')]
    def W(m, s, t):
        if (m, s) == ('K', 0): return ('v', MEM + 16 + 8*t)
        if (m, s) in STREAM: return ('v', SB + 8*t)
        k, b = HOME[(m, s)]; return (k, b + 8*t)
    acc = {'Q': AQ, 'K': AK, 'V': AV}
    seq = [('Q',0),('K',0),('V',0),('Q',1),('K',1),('V',1)] + [(m, s) for m in 'QKV' for s in range(2, 8)]
    main = [smf(acc[m]+4*t, MEM+4*s, W(m, s, t)) for (m, s) in seq for t in range(2)]
    QO, KO = MEM, MEM + 8
    SX, SM, PX = AQ, AQ + 4, AK
    O0, O1, LL, ONE = SB, SB+4, SB+8, SB+12
    main[36:36] = [mf32(SX, KX, QO, None), mf32(SX, KX+4, QO+4, SX)]
    main[47:47] = [mf32(SM, KO, QO, None), mf32(SM, KO+4, QO+4, SM)]
    main += [mf32(LL, ONE, PX, None), mf32(O0, VX, PX, None), mf32(O1, VX+4, PX, None)]
    sbload = lambda slot: [dsr(SB+4*i, ASB, slot*4096 + i*1024) for i in range(4)]
    F = {}
    def add(i, *x): F.setdefault(i, []).extend(x)
    dpp = 'quad_perm:[2,3,0,1] row_mask:0xf bank_mask:0xf'
    NP = 2 + (w == 3) + (1 if opt.get('log') and w == 1 else 0)
    add(-1, f's_waitcnt vmcnt({3+NP}) lgkmcnt(0)',
        f'v_max3_u32 v{T0}, v{MEM}, v{MEM+1}, v{MEM+2}', f'v_max_u32 v{T0}, v{T0}, v{MEM+3}')
    add(0, f'ds_write_b128 v{L16}, {vr(MEM,4)} offset:{L_MEM + chunk(w,0)*1024}', f's_waitcnt vmcnt({2+NP})',
        f'v_max3_u32 v{T0}, v{T0}, v{MEM+4}, v{MEM+5}', f'v_max3_u32 v{T0}, v{T0}, v{MEM+6}, v{MEM+7}')
    add(1, f'ds_write_b128 v{L16}, {vr(MEM+4,4)} offset:{L_MEM + chunk(w,1)*1024}', f'v_cmp_eq_u32 vcc, -1, v{T0}')
    sb = sbload(2)
    for i in range(4): add(2+i, sb[i])
    add(3, 's_nop 0' if nohop else f's_cbranch_vccnz {Lre2}')
    B1 = opt.get('b1', 7)
    add(B1, 's_waitcnt lgkmcnt(4)', 's_barrier')
    for s in range(2, 8): add(B1+s-2, dsr(MEM+4*s, L16, L_MEM + chunk(w,s)*1024))
    add(9, f's_waitcnt lgkmcnt({9-B1})')
    at = [B1+s-2 for s in range(2, 8)] + [B1+6+i for i in range(4)]
    sb = sbload(3)
    for i in range(4): add(B1+6+i, sb[i])
    for s in range(2, 6):
        g = 2*s + 7
        add(g, f's_waitcnt lgkmcnt({sum(1 for k in range(s-1, 10) if at[k] < g)})')
    add(19, 's_waitcnt lgkmcnt(1)'); add(20, 's_waitcnt lgkmcnt(0)')
    if not opt.get('novm'):
        for i in range(4): add(B1 + 1 + 4*i + w, dma[i])
        if w == 1 and flags: add(26, f'buffer_load_dword v{FLG}, v{VZ}, {ws}, s{S_F1} offen sc1')
        add(29 + (w & 1) if w < 2 else 34 + (w & 1), f'buffer_store_dwordx4 {vr(KVM,4)}, v{L16}, {ws}, s{S_PUB} offen ' + opt.get('pub', 'sc1'))
    sb = sbload(4)
    for i in range(4): add(21+i, sb[i])
    def epi(a, d0, d1):
        return [f'v_add_f32 v{a}, v{a}, v{a+2}', f'v_add_f32 v{a+1}, v{a+1}, v{a+3}',
                f'v_add_f32 v{a+4}, v{a+4}, v{a+6}', f'v_add_f32 v{a+5}, v{a+5}, v{a+7}',
                f'v_cvt_pk_bf16_f32 v{d0}, v{a}, v{a+4}', f'v_cvt_pk_bf16_f32 v{d1}, v{a+1}, v{a+5}']
    qe = epi(AQ, AQ, AQ+1)
    add(24, qe[0]); add(25, qe[1], qe[2]); add(26, qe[3], qe[4]); add(27, qe[5])
    add(28, f'ds_write2_b32 v{AQW}, v{AQ}, v{AQ+1} offset0:0 offset1:16')
    add(29, 's_waitcnt lgkmcnt(1)')
    sb = sbload(5)
    add(31, sb[0])
    add(32, f's_waitcnt vmcnt({(5 if w < 2 else 4) + (w == 1 and flags)}) lgkmcnt(1)', 's_barrier', dsr(QO, AQR, 0))
    add(33, dsr(QO+4, AQR, 2048)); add(34, sb[1]); add(35, 's_waitcnt lgkmcnt(2)', sb[2])
    add(36, 's_waitcnt lgkmcnt(2)', sb[3])
    ke = epi(AK, KVM, KVM+1)
    add(36, ke[0]); add(37, 's_nop 0', ke[1], ke[2]); add(38, 's_nop 1', ke[3], ke[4], ke[5])
    add(39, 's_nop 0', f'ds_write2_b32 v{AQW}, v{KVM}, v{KVM+1} offset0:128 offset1:144', f'v_add_f32_dpp v{SX}, v{SX+2}, v{SX} {dpp}')
    add(40, dsr(KX, VZ, L_ZERO), f'v_add_f32_dpp v{SX+1}, v{SX+3}, v{SX+1} {dpp}')
    add(41, 's_waitcnt lgkmcnt(2)', dsr(KX+4, VZ, L_ZERO), f'v_exp_f32 v{SX+2}, v{SX}')
    add(42, f'v_exp_f32 v{SX+3}, v{SX+1}')
    add(43, 's_waitcnt lgkmcnt(2)', 's_barrier', dsr(KO, AQR, 512), f'v_cvt_pk_bf16_f32 v{SX+2}, v{SX+2}, v{SX+3}')
    add(44, dsr(KO+4, AQR, 512 + 2048), f'ds_write_b32 v{L16}, v{SX+2} offset:{L_P + 4*w}')
    add(45, dsr(ONE, VZ, L_ONES))
    add(46, 's_waitcnt lgkmcnt(3)')
    add(47, 's_waitcnt lgkmcnt(2)')
    add(48, 's_waitcnt lgkmcnt(0)', 's_barrier', dsr(PX, L16, L_P))
    add(49, 's_nop 2')
    add(50, f'v_add_f32_dpp v{SM}, v{SM+2}, v{SM} {dpp}', f'v_add_f32_dpp v{SM+1}, v{SM+3}, v{SM+1} {dpp}')
    ve = [f'v_add_f32 v{AV}, v{AV}, v{AV+2}', f'v_add_f32 v{AV+1}, v{AV+1}, v{AV+3}',
          f'v_add_f32 v{AV+4}, v{AV+4}, v{AV+6}', f'v_add_f32 v{AV+5}, v{AV+5}, v{AV+7}',
          f'v_cvt_pk_bf16_f32 v{KVM+2}, v{AV}, v{AV+1}', f'v_cvt_pk_bf16_f32 v{KVM+3}, v{AV+4}, v{AV+5}']
    add(51, f's_cmp_eq_u32 s{S_STEP}, 63', f'v_mul_f32 v{SM}, s{S_C}, v{SM}', f'v_mul_f32 v{SM+1}, s{S_C}, v{SM+1}')
    add(52, f's_cbranch_scc1 {Lfin}', f'v_exp_f32 v{SM+2}, v{SM}')
    add(53, f'v_exp_f32 v{SM+3}, v{SM+1}', ve[0], ve[1])
    so = lines(step_offsets, w, opt.get('kvstride', 16384))
    so, so_late = so[:-7], so[-7:]
    g = B1
    while so:
        g += 1
        cur = F.get(g, [])
        ns = sum(x.startswith('s_') for x in cur); nm = sum(x.startswith(('ds_', 'buffer_')) for x in cur); nv = len(cur) - ns - nm
        free = min(3 - ns - nm - nv, 2 - ns - nm if nv else 3)
        if any('barrier' in x for x in cur): free = 0
        for _ in range(max(0, free)):
            if so: add(g, so.pop(0))
    assert g < 36, g
    for g in (22, 23, 24):
        if sum(x.startswith('s_') for x in F.get(g, [])) == 0: add(g, 's_nop 0')
    for k in list(F):
        if k not in (-1, 0, 1): F[k] = slot_order(F[k])
    F[51].append('s_waitcnt lgkmcnt(0)')
    for name in stamps:
        if isinstance(name, int): add(name, *stamp(name))
    lg = opt.get('log')
    if lg: F[B1].append('s_memtime s[20:21]')
    if opt.get('align'): A(f'.p2align {opt["align"]}')
    A(f'{Lstep}:')
    if ph:
        A(f's_waitcnt vmcnt({3+NP})\ns_memtime s[30:31]\ns_waitcnt lgkmcnt(0)')
        A(f's_cmp_eq_u32 s{S_STEP}, 0\ns_cbranch_scc1 {pf}{w}_nost')
        for i in range(5): A(f's_sub_u32 s{S_T}, s{22+2*i}, s{20+2*i}\ns_add_u32 s{90+i}, s{90+i}, s{S_T}')
        A(f'{pf}{w}_nost:\ns_mov_b32 s20, s30')
    A.weave(main, F)
    def pv_tail(fast):
        A(f'v_cvt_pk_bf16_f32 v{PMA}, v{SM+2}, v{SM+3}\nv_cvt_pk_bf16_f32 v{PMB+1}, v{SM+2}, v{SM+3}')
        if fast: A(ve[2])
        A(mf16(LL, ONE, PMA, LL))
        if fast: A('\n'.join([ve[3], ve[4], ve[5]]))
        A(mf16(O0, KVM+2, PMA, O0)); A('s_nop 2')
        A(mf16(O1, KVM+2, PMB, O1))
        A(f's_mov_b64 exec, {sr(S_EXO,2)}')
        A(f'v_rcp_f32 v{T0}, v{LL}')
        A(f'v_subrev_u32 v{T1}, s{S_LO}, v{LL}')
        A(f'v_cmp_lt_u32 vcc, s{S_RNG}, v{T1}')
        for i in range(4): A(f'v_mul_f32 v{O0+i}, v{T0}, v{O0+i}')
        A(f'v_cvt_pk_bf16_f32 v{AV}, v{O0}, v{O0+1}\nv_cvt_pk_bf16_f32 v{AV+1}, v{O0+2}, v{O0+3}')
        oa = L_O + (w >> 1)*1024 + (w & 1)*32
        A(f'ds_write_b64 v{L16}, {vr(AV,2)} offset:{oa}')
        for i in range(4): A(f'v_mul_f32 v{O1+i}, v{T0}, v{O1+i}')
        A(f'v_cvt_pk_bf16_f32 v{AV+2}, v{O1}, v{O1+1}\nv_cvt_pk_bf16_f32 v{AV+3}, v{O1+2}, v{O1+3}')
        A(f'ds_write_b64 v{L16}, {vr(AV+2,2)} offset:{oa + 8}')
        A('s_mov_b64 exec, -1')
    pv_tail(True)
    for x in stamp('ow'): A(x)
    A('s_nop 0' if nohop else f's_cbranch_vccnz {Lslow}')
    A(f'{Lback}:')
    for i in range(12): A(f'v_mov_b32 v{WA+i}, 0')
    A('s_waitcnt lgkmcnt(0)\ns_barrier')
    for x in stamp('b4'): A(x)
    A(dsr(AQ, L16, L_O)); A(dsr(AQ+4, L16, L_O + 1024))
    for i in range(12, 24): A(f'v_mov_b32 v{WA+i}, 0')
    def WO(cc, T):
        q, tt = T >> 2, T & 3
        if (cc, q) == (1, 1): return ('v', MEM + 8*tt)
        k, b = HOME[('W', cc, q)]; return (k, b + 8*tt)
    main = [smf(WA+4*T, AQ+4*cc, WO(cc, T)) for T in range(8) for cc in range(2)]
    def ep(T):
        a = WA + 4*T
        return [f'v_add_f32 v{a}, v{a}, v{a+2}', f'v_add_f32 v{a+1}, v{a+1}, v{a+3}', f'v_cvt_pk_bf16_f32 v{AK+T}, v{a}, v{a+1}']
    F = {}
    add(-1, 's_waitcnt lgkmcnt(1)'); add(0, 's_waitcnt lgkmcnt(0)')
    for i in range(8): add(i, dsr(MEM+4*i, ASB, 6*4096 + i*1024))
    SEL, R = AV, AV + 4
    later = pre_q + ([dsr(SEL, L16, L_SEL)] if w == 0 else [])
    for i, x in enumerate(later): add(8+i, x)
    add(8, 's_waitcnt lgkmcnt(6)'); add(10, 's_waitcnt lgkmcnt(6)'); add(12, 's_waitcnt lgkmcnt(4)')
    for g in (1, 2, 3, 4, 5, 6, 7, 9, 11, 13, 14): add(g, so_late.pop(0) if so_late else 's_nop 0')
    for T in range(6):
        e = ep(T); add(2*T+3, e[0]); add(2*T+4, e[1], e[2])
    e6 = ep(6); add(15, e6[0], e6[1], e6[2])
    for k in list(F): F[k] = slot_order(F[k])
    F[10 + w].append(f'buffer_store_dwordx4 {vr(AK,4)}, v{APS}, {ws}, s{S_PST} offen {st}')
    A.weave(main, F)
    for x in ep(7): A(x)
    A(f'buffer_store_dwordx4 {vr(AK+4,4)}, v{APS}, {ws}, s{S_PST1} offen {st}')
    for x in stamp('st'): A(x)
    if lg: A('s_memtime s[22:23]')
    mload = [f'buffer_load_dwordx4 {vr(MEM+4*s,4)}, v{L16}, {ws}, s{S_MLD} offen offset:{s*1024} sc1' for s in range(2)]
    d1, d1b, d2, d3 = opt.get('d1', 56), opt.get('d1b', 0), opt.get('d2', 32), opt.get('d3', 24)
    def pad(n):
        while n > 0:
            A(f'v_mov_b32 v{T1}, 0\ns_nop 2'); n -= 4
    if w == 0:
        Lp = f'{pf}{w}_p1'
        pl = [f'buffer_load_dwordx4 {vr(MEM+4*p,4)}, v{L16}, {ws}, s{S_PLD + (p >> 2)} offen offset:{(p & 3)*1024} sc1' for p in range(8)]
        work = zero_w + zero_a[8:]
        for x in work: A(x)
        pad(d1 - len(work))
        blind = opt.get('blind1', 1)
        if blind:
            for x in pl: A(x)
            pad(d1b)
        A(f'{Lp}:')
        for x in pl: A(x)
        A(f's_add_u32 s{S_R1}, s{S_R1}, 1\ns_sub_u32 s{S_BUD}, s{S_BUD}, 1\ns_cbranch_scc1 {Lbail}')
        A('s_waitcnt lgkmcnt(0)')
        for p in range(8):
            A(f's_waitcnt vmcnt({8*blind + 7 - p})')
            b = MEM + 4*p
            if p == 0: A(f'v_max3_u32 v{T0}, v{b}, v{b+1}, v{b+2}\nv_max_u32 v{T0}, v{T0}, v{b+3}')
            else: A(f'v_max3_u32 v{T0}, v{T0}, v{b}, v{b+1}\nv_max3_u32 v{T0}, v{T0}, v{b+2}, v{b+3}')
            A(mf32(R, MEM+4*p, SEL, None if p == 0 else R))
        A(f"""
        v_cmp_eq_u32 vcc, -1, v{T0}
        s_nop 4
        {'s_nop 0' if nohop else 's_cbranch_vccnz ' + Lp}
        s_mov_b64 exec, {sr(S_EXM,2)}
        v_cvt_pk_bf16_f32 v{T0}, v{R}, v{R+1}
        v_cvt_pk_bf16_f32 v{T1}, v{R+2}, v{R+3}
        buffer_store_dwordx2 {vr(T0,2)}, v{AMS}, {ws}, s{S_MST} offen {st}
        s_mov_b64 exec, -1
        s_barrier
        """)
        work1 = zero_a[:8] + pre_x
        work2 = ['s_waitcnt vmcnt(3)'] + pre_k
    else:
        for x in pre_k + zero_a: A(x)
        A('s_waitcnt vmcnt(2)')
        if w == 1 and flags:
            Lf = f'{pf}{w}_flg'
            A(f"""
            {Lf}:
            v_cmp_ne_u32 vcc, 1, v{FLG}
            s_cbranch_vccz {Lf}_ok
            buffer_load_dword v{FLG}, v{VZ}, {ws}, s{S_F1} offen sc1
            s_sub_u32 s{S_BUD}, s{S_BUD}, 1
            s_cbranch_scc1 {Lbail}
            s_waitcnt vmcnt(0)
            s_branch {Lf}
            {Lf}_ok:
            s_cmp_lt_u32 s{S_STEP}, 61
            s_cselect_b32 s{S_T}, 4, 0
            s_add_u32 s{S_F1}, s{S_F1}, s{S_T}
            """)
        A('s_barrier')
        work1, work2 = pre_x, []
    for x in stamp('b5'): A(x)
    if lg: A('s_memtime s[24:25]')
    for x in work1: A(x)
    pad(d2 - len(work1))
    for x in mload: A(x)
    for x in work2: A(x)
    A(f's_add_u32 s{S_STEP}, s{S_STEP}, 1')
    pad(d3 - len(work2))
    for x in mload: A(x)
    def poison():
        for i in range(2): A(f'buffer_store_dwordx4 {vr(POIS,4)}, v{L16}, {ws}, s{S_PPO} offen offset:{i*1024} {st}')
        if w == 3:
            A(f's_mov_b64 exec, 0xffff\nbuffer_store_dwordx4 {vr(POIS,4)}, v{L16}, {ws}, s{S_MPO} offen {st}\ns_mov_b64 exec, -1')
    if lg and w == 1:
        A(f"""
        s_waitcnt lgkmcnt(0)
        v_mov_b32 v8, s20
        v_mov_b32 v9, s22
        v_mov_b32 v10, s24
        v_mov_b32 v11, s{S_R2}
        s_lshl_b32 s26, s{S_H}, 6
        s_add_u32 s26, s26, s{S_STEP}
        s_lshl_b32 s26, s26, 4
        s_add_u32 s26, s26, {WS_STAT + 0x10000}
        s_mov_b64 exec, 1
        buffer_store_dwordx4 v[8:11], v{VZ}, {ws}, s26 offen
        s_mov_b64 exec, -1
        """)
    poison()
    pad(opt.get('d4', 12))
    A(f's_branch {Lstep}')
    A(f'{Lre2}:')
    A(f's_waitcnt vmcnt({NP}) lgkmcnt(0)')
    for x in pre_q: A(x)
    for i in range(16): A(f'v_mov_b32 v{AQ+i}, 0')
    Lq = f'{pf}{w}_re2b'
    A(f"""
    {Lq}:
    v_max3_u32 v{T0}, v{MEM}, v{MEM+1}, v{MEM+2}
    v_max3_u32 v{T0}, v{T0}, v{MEM+3}, v{MEM+4}
    v_max3_u32 v{T0}, v{T0}, v{MEM+5}, v{MEM+6}
    v_max_u32 v{T0}, v{T0}, v{MEM+7}
    v_cmp_eq_u32 vcc, -1, v{T0}
    s_add_u32 s{S_R2}, s{S_R2}, 1
    s_cbranch_vccz {Lstep}
    """)
    for x in mload: A(x)
    A(f"""
    s_sub_u32 s{S_BUD}, s{S_BUD}, 1
    s_waitcnt vmcnt(0)
    s_cbranch_scc0 {Lq}
    {Lbail}:
    s_endpgm
    """)
    A(f"""
    {Lslow}:
    s_waitcnt lgkmcnt(0)
    ds_write_b64 v{L16}, {vr(SX,2)} offset:{L_P + 1024 + (w >> 1)*1024 + (w & 1)*8}
    s_waitcnt lgkmcnt(0)
    s_barrier
    ds_read_b128 {vr(AV,4)}, v{L16} offset:{L_P + 1024}
    ds_read_b128 {vr(AV+4,4)}, v{L16} offset:{L_P + 2048}
    s_waitcnt lgkmcnt(0)
    v_max3_f32 v{T0}, v{AV}, v{AV+1}, v{AV+2}
    v_max3_f32 v{T0}, v{T0}, v{AV+3}, v{AV+4}
    v_max3_f32 v{T0}, v{T0}, v{AV+5}, v{AV+6}
    v_max3_f32 v{T0}, v{T0}, v{AV+7}, v{SM}
    v_max_f32 v{T0}, v{T0}, v{SM+1}
    v_mov_b32 v{T1}, v{T0}
    v_permlane32_swap_b32 v{T1}, v{T0}
    v_max_f32 v{T0}, v{T0}, v{T1}
    v_mov_b32 v{T1}, v{T0}
    v_permlane16_swap_b32 v{T1}, v{T0}
    v_max_f32 v{T0}, v{T0}, v{T1}
    """)
    for i in range(8): A(f'v_sub_f32 v{AV+i}, v{AV+i}, v{T0}\nv_exp_f32 v{AV+i}, v{AV+i}')
    for i in range(2): A(f'v_sub_f32 v{SM+2+i}, v{SM+i}, v{T0}\nv_exp_f32 v{SM+2+i}, v{SM+2+i}')
    for i in range(4): A(f'v_cvt_pk_bf16_f32 v{PX+i}, v{AV+2*i}, v{AV+2*i+1}')
    A(mf32(LL, ONE, PX, None)); A(mf32(O0, VX, PX, None)); A(mf32(O1, VX+4, PX, None))
    pv_tail(False)
    A(f's_branch {Lback}')
    A(f'{Lfin}:')
    for x in ve: A(x)
    A(f's_add_u32 s{S_PUB}, s{S_PUB}, 4096')
    A(f'buffer_store_dwordx4 {vr(KVM,4)}, v{L16}, {ws}, s{S_PUB} offen sc1')
    if opt.get('stamp'):
        A(f"""
        s_memtime {sr(S_T1,2)}
        s_waitcnt lgkmcnt(0)
        s_sub_u32 s{S_T1}, s{S_T1}, s{S_T0}
        s_sub_u32 s{S_T0}, s{S_T0}, s62
        v_mov_b32 v0, s{S_T1}
        v_mov_b32 v1, s{S_R1}
        v_mov_b32 v2, s{S_R2}
        v_mov_b32 v3, s{S_T0}
        s_lshl_b32 s{S_T}, s{S_H}, 6
        s_add_u32 s{S_T}, s{S_T}, {WS_STAT + 16*w}
        s_mov_b64 exec, 1
        buffer_store_dwordx4 v[0:3], v{VZ}, {ws}, s{S_T} offen
        """)
        if ph:
            for i in range(5): A(f'v_mov_b32 v{4+i}, s{90+i}')
            A(f's_lshl_b32 s{S_T}, s{S_H}, 7\ns_add_u32 s{S_T}, s{S_T}, {WS_STAT + 4096 + 32*w}')
            A(f'buffer_store_dwordx4 v[4:7], v{VZ}, {ws}, s{S_T} offen\nbuffer_store_dword v8, v{VZ}, {ws}, s{S_T} offen offset:16')
    A('s_endpgm')

def proto(opt):
    opt = dict(noflags=1, **opt)
    A = Asm()
    name = 'k_kernel'
    A(f'; @launch kernel={name} grid=(256,1,1) block=(256,1,1) lds=163840')
    A(f'.amdgcn_target "amdgcn-amd-amdhsa--gfx950"\n.text\n.globl {name}\n.p2align 8\n.type {name},@function\n{name}:')
    A(f'''
    s_memtime s[62:63]
    s_load_dwordx16 s[64:79], s[0:1], 0
    s_load_dwordx8 s[80:87], s[0:1], 64
    s_load_dwordx2 s[88:89], s[0:1], 96
    s_getreg_b32 s3, hwreg(HW_REG_XCC_ID, 0, 4)
    v_lshrrev_b32 v1, 6, v0
    v_mov_b32 v2, 0
    v_mov_b32 v3, 1
    v_readfirstlane_b32 s{S_WAVE}, v1
    s_waitcnt lgkmcnt(0)
    s_cmp_lg_u32 s3, 0
    s_cbranch_scc1 L_exit
    s_cmp_lg_u32 s{S_WAVE}, 0
    s_cbranch_scc1 L_tk
    s_mov_b64 exec, 1
    global_atomic_add v4, v2, v3, {sr(P_DBG,2)} sc0 sc1
    s_waitcnt vmcnt(0)
    ds_write_b32 v2, v4 offset:{L_ROLE}
    s_waitcnt lgkmcnt(0)
    s_mov_b64 exec, -1
    L_tk:
    s_barrier
    ds_read_b32 v4, v2 offset:{L_ROLE}
    s_waitcnt lgkmcnt(0)
    v_readfirstlane_b32 s{S_H}, v4
    s_cmp_ge_u32 s{S_H}, {opt.get('solo', 32)}
    s_cbranch_scc1 L_exit
    ''')
    srd(A, S_WS, P_WSP, WS_SIZE)
    for w in range(1, 4):
        A(f's_cmp_eq_u32 s{S_WAVE}, {w}\ns_cbranch_scc1 C{w}_entry')
    for w in range(4):
        A(f'C{w}_entry:')
        chain_wave(A, w, opt)
    A('L_exit:\ns_endpgm')
    out, n = hazard.fix(A.lines, verbose=opt.get('verbose'))
    return '\n'.join(out) + KERNEL_TAIL.format(name=name)

if __name__ == '__main__':
    import sys
    open(sys.argv[1], 'w').write(proto(dict(stamp=1, verbose=1)))
```

```python
import hazard

class Asm:
    def __init__(self):
        self.lines = []
        self.uid = 0
    def __call__(self, s):
        for ln in s.split('\n'):
            t = ln.strip()
            if not t: continue
            if t.endswith(':') or t.startswith('.') or t.startswith(';'):
                self.lines.append(t)
            else:
                self.lines.append('    ' + t)
    def label(self, base):
        self.uid += 1
        return f'L_{base}_{self.uid}'
    def weave(self, main, fill):
        for x in fill.get(-1, []): self(x)
        for i, m in enumerate(main):
            self(m)
            for x in fill.get(i, []): self(x)
        assert all(k < len(main) for k in fill), (max(fill), len(main))

def vr(b, n=1, k='v'):
    return f'{k}{b}' if n == 1 else f'{k}[{b}:{b+n-1}]'
def sr(b, n=1):
    return vr(b, n, 's')

WS_KV   = 0x0000000
WS_QX   = 0x2000000
WS_KVM  = 0x3000000
WS_P    = 0x3800000
WS_M    = 0x3900000
WS_DUMMY= 0x3910000
WS_FLAG = 0x3A00000
WS_F1   = WS_FLAG
WS_FF   = WS_FLAG + 0x2000
WS_FA   = WS_FLAG + 0x4000
WS_FO   = WS_FLAG + 0x5000
WS_AKV  = 0x3C00000
WS_AO   = 0x4000000
WS_FP   = 0x5000000
DBG_TICKET, DBG_INIT, DBG_MEMB = 0, 64, 128
WS_STAT = 0x3B00000
WS_SIZE = 0x10000000

KERNEL_TAIL = '''
.section .rodata,"a"
.p2align 6
.amdhsa_kernel {name}
  .amdhsa_next_free_vgpr 512
  .amdhsa_next_free_sgpr 102
  .amdhsa_accum_offset 256
  .amdhsa_group_segment_fixed_size 0
  .amdhsa_kernarg_size 104
  .amdhsa_user_sgpr_count 2
  .amdhsa_user_sgpr_kernarg_segment_ptr 1
  .amdhsa_system_sgpr_workgroup_id_x 1
  .amdhsa_float_denorm_mode_32 3
  .amdhsa_float_denorm_mode_16_64 3
.end_amdhsa_kernel
'''
```

```python
import re

TRANS = ('v_exp_f32','v_log_f32','v_rcp_f32','v_rsq_f32','v_sqrt_f32','v_sin_f32','v_cos_f32','v_exp_f16','v_rcp_iflag_f32')

def regs_of(tok):
    tok = tok.strip()
    tok = re.sub(r'^-', '', tok)
    m = re.match(r'^abs\((.*)\)$', tok) or re.match(r'^\|(.*)\|$', tok)
    if m: tok = m.group(1)
    m = re.match(r'^([vas])\[(\d+):(\d+)\]$', tok)
    if m: return {(m.group(1), i) for i in range(int(m.group(2)), int(m.group(3))+1)}
    m = re.match(r'^([vas])(\d+)$', tok)
    if m: return {(m.group(1), int(m.group(2)))}
    if tok in ('vcc','vcc_lo','vcc_hi'): return {('vcc',0)}
    if tok in ('exec','exec_lo','exec_hi'): return {('exec',0)}
    if tok == 'm0': return {('m0',0)}
    return set()

class Ins:
    __slots__ = ('text','mn','ops','kind','wr','rd','states','passes','srcc','ab','target','uncond','dpp','trans','widest','ldsdma','idx')
    def __init__(self, text):
        self.text = text
        t = text.split(';')[0].strip()
        parts = t.split(None, 1)
        mn = parts[0]; rest = parts[1] if len(parts) > 1 else ''
        mn = re.sub(r'_e32$|_e64$', '', mn)
        self.dpp = mn.endswith('_dpp') or 'quad_perm' in rest or 'row_' in rest
        mn = re.sub(r'_dpp$|_sdwa$', '', mn)
        self.mn = mn
        ops = []; cur = ''; depth = 0
        for ch in rest:
            if ch in '[(': depth += 1
            if ch in '])': depth -= 1
            if ch == ',' and depth == 0: ops.append(cur.strip()); cur = ''
            else: cur += ch
        if cur.strip(): ops.append(cur.strip())
        mods = ''
        if ops:
            sp = ops[-1].split(None, 1)
            if len(sp) > 1 and not ops[-1].startswith('hwreg'):
                ops[-1] = sp[0]; mods = sp[1]
        self.ops = ops
        self.states = 1; self.passes = 0; self.srcc = set(); self.ab = set()
        self.wr = set(); self.rd = set(); self.target = None; self.uncond = False
        self.trans = mn in TRANS; self.widest = set(); self.ldsdma = False
        R = [regs_of(o) for o in ops]
        U = lambda l: set().union(*l) if l else set()
        if mn.startswith('v_mfma') or mn.startswith('v_smfmac'):
            self.kind = 'mfma'
            self.passes = 8 if '32x32' in mn else 4
            self.wr = R[0]
            if mn.startswith('v_smfmac'):
                self.srcc = R[0]; self.ab = R[1] | R[2] | R[3]
            else:
                self.srcc = R[3]; self.ab = R[1] | R[2]
            self.rd = self.srcc | self.ab
        elif mn.startswith('v_'):
            self.kind = 'valu'
            if mn == 'v_nop': pass
            elif mn.startswith('v_permlane') and 'swap' in mn:
                self.wr = R[0] | R[1]; self.rd = R[0] | R[1]
            elif re.match(r'v_(add|sub|subrev)_co_|v_(addc|subb|subbrev)_co_|v_div_scale|v_mad_u64_u32', mn):
                self.wr = R[0] | R[1]; self.rd = U(R[2:])
            else:
                self.wr = R[0]; self.rd = U(R[1:])
                if mn.startswith('v_fmac') or mn.startswith('v_dot2c') or mn.startswith('v_writelane') or self.dpp: self.rd |= R[0]
                if mn.startswith('v_cmpx'): raise ValueError('avoid v_cmpx')
        elif mn.startswith('ds_'):
            self.kind = 'ds'
            if mn.startswith('ds_read') or mn.startswith('ds_bpermute') or mn.startswith('ds_swizzle') or '_rtn' in mn:
                self.wr = R[0]; self.rd = U(R[1:])
            else: self.rd = U(R)
        elif mn.startswith('buffer_') or mn.startswith('global_'):
            self.kind = 'vmem'
            lds = ('lds' in mods.split()) or mn.startswith('global_load_lds')
            if mn in ('buffer_wbl2','buffer_inv'): pass
            elif lds:
                self.rd = U(R) | {('m0',0)}; self.ldsdma = True
            elif '_load_' in mn:
                self.wr = R[0]; self.rd = U(R[1:])
            elif '_atomic_' in mn:
                self.rd = U(R)
                if 'sc0' in mods.split(): self.wr = R[0]
            else:
                self.rd = U(R)
                if mn.endswith('x4') or mn.endswith('x3'):
                    self.widest = R[0] if mn.startswith('buffer_') else R[1]
        elif mn.startswith('s_'):
            self.kind = 'salu'
            if mn == 's_nop': self.states = int(ops[0], 0) + 1
            elif mn == 's_branch': self.target = ops[0]; self.uncond = True
            elif mn.startswith('s_cbranch'): self.target = ops[0]
            elif mn == 's_endpgm': self.uncond = True
            elif mn in ('s_setpc_b64','s_swappc_b64','s_call_b64'): raise ValueError('indirect jumps unsupported by checker')
            elif mn.startswith('s_cmp') or mn.startswith('s_bitcmp') or mn in ('s_waitcnt','s_barrier','s_sleep','s_setprio','s_sethalt'):
                self.rd = U(R)
            else:
                self.wr = R[0] if R else set(); self.rd = U(R[1:])
        else:
            raise ValueError('unknown instruction: ' + text)

def need(P, C):
    n = 0
    vg = lambda s: {x for x in s if x[0] in 'va' and x[0] != 'vcc'}
    sg = lambda s: {x for x in s if x[0] in ('s','vcc')}
    if P.kind == 'valu':
        w = vg(P.wr)
        if w:
            if C.kind == 'mfma' and w & C.rd: n = max(n, 2)
            if C.kind == 'valu':
                if P.trans and not C.trans and w & C.rd: n = max(n, 1)
                if (C.mn.startswith('v_permlane') or C.dpp) and w & C.rd: n = max(n, 2)
                if C.mn in ('v_readfirstlane_b32','v_readlane_b32') and w & C.rd: n = max(n, 1)
        s = sg(P.wr)
        if s:
            if C.kind in ('valu','mfma') and s & C.rd: n = max(n, 4 if C.mn in ('v_readlane_b32','v_writelane_b32') else 2)
            if C.kind == 'vmem' and s & C.rd: n = max(n, 5)
            if C.kind == 'salu' and s & C.rd and not C.mn.startswith('s_cbranch'): n = max(n, 1)
    elif P.kind == 'mfma':
        big = 8 if P.passes == 4 else 12
        ovl = 6 if P.passes == 4 else 10
        if C.kind == 'mfma':
            if P.wr & C.ab: n = max(n, big)
            if P.wr & C.srcc and not (P.wr == C.srcc and P.passes == C.passes): n = max(n, ovl)
            if P.wr & C.wr and not (P.wr == C.wr and P.passes == C.passes): n = max(n, ovl)
        elif C.kind in ('valu','ds','vmem'):
            if P.wr & (C.rd | C.wr): n = max(n, big)
            if C.kind == 'valu' and P.srcc & C.wr: n = max(n, 3 if P.passes == 4 else 7)
    elif P.kind == 'vmem':
        if P.widest & C.wr: n = max(n, 2 if C.kind in ('valu','mfma') else 1)
    elif P.kind == 'salu':
        if ('m0',0) in P.wr and C.ldsdma: n = max(n, 1)
    return n

MAXD = 12
def parse(lines):
    items = []
    for ln in lines:
        t = ln.split(';')[0].strip()
        if not t: items.append(('raw', ln)); continue
        if t.startswith('.') and not t.endswith(':'): items.append(('raw', ln)); continue
        if t.endswith(':'): items.append(('label', t[:-1], ln)); continue
        items.append(('ins', Ins(ln), ln))
    return items

def fix(lines, verbose=False):
    total = 0
    while True:
        items = parse(lines)
        ins = []; labels = {}
        for k, it in enumerate(items):
            if it[0] == 'label': labels[it[1]] = len(ins)
            elif it[0] == 'ins': it[1].idx = k; ins.append(it[1])
        preds = [[] for _ in range(len(ins)+1)]
        for i, I in enumerate(ins):
            if not I.uncond: preds[i+1].append(i)
            if I.target is not None:
                if I.target not in labels: raise ValueError('unknown label ' + I.target)
                preds[labels[I.target]].append(i)
        adds = {}
        for i, C in enumerate(ins):
            if C.kind == 'salu' and not C.rd: continue
            worst = 0; why = None
            stack = [(p, 0) for p in preds[i]]; seen = {}
            while stack:
                p, d = stack.pop()
                if d >= MAXD or seen.get(p, 99) <= d: continue
                seen[p] = d
                P = ins[p]
                n = need(P, C)
                if n - d > worst: worst = n - d; why = P
                dd = d + P.states + adds.get(P.idx, 0)
                for q in preds[p]: stack.append((q, dd))
            if worst > 0:
                adds[C.idx] = worst
                if verbose: print(f'hazard: +{worst} before [{C.text.strip()}] after [{why.text.strip()}]')
        if not adds: return lines, total
        out = []
        for k, it in enumerate(items):
            if k in adds:
                out.append(f'    s_nop {adds[k]-1}'); total += adds[k]
            out.append(it[-1] if it[0] != 'raw' else it[1])
        lines = out
```

```python
from common import *
from chain import S_WS, S_H, S_WAVE, S_T, S_WQ, S_WK, S_WV, S_WO, S_HOFF, S_HWO, S_BUD, S_C, srd, mf32, mf16, dsr
from chain import P_AX, P_WQKV, P_AWO, P_BX, P_OUT, P_DBG, P_WQ, P_WK, P_WV, P_WO

S_I    = 18
S_X    = 8
S_Y    = 12
S_SEG  = 38
S_A, S_B, S_D, S_E, S_F = 39, 40, 41, 42, 43
S_M0   = 44
S_CNT  = 45
S_EXA  = 50
S_EXB  = 52
ws = sr(S_WS, 4)

LANE, L16, VZ, VT = 104, 105, 106, 107
XST = 1056
XBUF = 32 * XST
L_AW = 2 * XBUF
AWM = 16384 + 128

def mf3232(d, a, b, c, ka='v', kb='v'):
    return f'v_mfma_f32_32x32x16_bf16 {vr(d,16)}, {vr(a,4,ka)}, {vr(b,4,kb)}, ' + ('0' if c is None else vr(c,16))
def mfk(d, a, b, c):
    return f'v_mfma_f32_16x16x32_bf16 {vr(d,4)}, {vr(a[1],4,a[0])}, {vr(b[1],4,b[0])}, ' + ('0' if c is None else vr(c,4))

def spin(A, name, load, cond_wait, bail):
    L = A.label(name)
    A(f"""
    {L}:
    {load}
    s_sub_u32 s{S_BUD}, s{S_BUD}, 1
    s_cbranch_scc1 {bail}
    s_waitcnt vmcnt(0)
    {cond_wait}
    s_cbranch_vccz {L}_ok
    s_sleep 2
    s_branch {L}
    {L}_ok:
    """)

def set_flag(A, soff):
    L = A.label('flag')
    A(f"""
    s_cmp_lg_u32 s{S_WAVE}, 0
    s_cbranch_scc1 {L}
    v_mov_b32 v{VT}, 1
    s_mov_b64 exec, 1
    buffer_store_dword v{VT}, v{VZ}, {ws}, s{soff} offen sc1
    s_mov_b64 exec, -1
    {L}:
    """)

def prefetch(A):
    A(f"""
    v_lshrrev_b32 v1, 4, v0
    v_and_b32 v2, 15, v0
    v_lshlrev_b32 v1, 13, v1
    v_lshl_add_u32 v1, v2, 4, v1
    s_mul_i32 s{S_T}, s{S_I}, {80*8192}
    s_add_u32 s{S_T}, s{S_T}, s{S_HOFF}
    """)
    r = 8
    for p in range(5):
        for s in (S_WK, S_WV, S_WQ):
            A(f'buffer_load_dwordx4 {vr(r,4)}, v1, {sr(s,4)}, s{S_T} offen'); r += 4
        A(f's_add_u32 s{S_T}, s{S_T}, {16*8192}')
    A(f"""
    v_lshlrev_b32 v1, 4, v0
    s_mul_i32 s{S_T}, s{S_I}, {5*4096}
    s_min_u32 s{S_T}, s{S_T}, {131072 - 5*4096}
    s_add_u32 s{S_T}, s{S_T}, s{S_HWO}
    """)
    for p in range(5):
        A(f'buffer_load_dwordx4 {vr(r,4)}, v1, {sr(S_WO,4)}, s{S_T} offen\ns_add_u32 s{S_T}, s{S_T}, 4096'); r += 4

def load_qkv(A):
    VS, AT0, AT1 = 100, 101, 102
    RING = 0x8000
    A(f"""
    v_lshrrev_b32 v1, 4, v{LANE}
    s_and_b32 s{S_T}, s{S_WAVE}, 1
    s_lshl_b32 s{S_T}, s{S_T}, 2
    v_add_u32 v2, s{S_T}, v1
    v_lshlrev_b32 v2, 1, v2
    v_and_b32 v3, 15, v{LANE}
    v_xor_b32 v2, v2, v3
    v_lshlrev_b32 v{VS}, 13, v1
    v_lshl_add_u32 v{VS}, v2, 4, v{VS}
    s_lshl_b32 s{S_T}, s{S_WAVE}, 16
    v_add_u32 v{VS}, s{S_T}, v{VS}
    v_lshrrev_b32 v2, 2, v{LANE}               ; 4g+r
    v_and_b32 v3, 7, v2
    s_lshl_b32 s{S_T}, s{S_WAVE}, 1
    v_xor_b32 v3, s{S_T}, v3
    v_lshlrev_b32 v{AT0}, 8, v2
    v_lshl_add_u32 v{AT0}, v3, 5, v{AT0}
    v_and_b32 v3, 3, v{LANE}
    v_lshl_add_u32 v{AT0}, v3, 3, v{AT0}
    v_add_u32 v{AT0}, {RING}, v{AT0}
    v_xor_b32 v{AT1}, 32, v{AT0}
    v_add_u32 v{AT0+2}, 0x10000, v{AT0}
    v_add_u32 v98, 0x10000, v{AT1}
    s_lshl_b32 s{S_M0}, s{S_WAVE}, 10
    """)
    units = [(m, c) for m in 'KVQ' for c in range(8)]
    def issue(k):
        m, c = units[k]; s = {'Q': S_WQ, 'K': S_WK, 'V': S_WV}[m]
        for Q in range(4):
            A(f's_add_u32 m0, s{S_M0}, {RING + (k % 8)*16384 + Q*4096}')
            A(f's_add_u32 s{S_T}, s{S_HOFF}, {(64*c + 32*(Q >> 1) + 4*(Q & 1))*8192}')
            A(f'buffer_load_dwordx4 v{VS}, {sr(s,4)}, s{S_T} offen lds')
    for k in range(7): issue(k)
    for k, (m, c) in enumerate(units):
        A(f's_waitcnt vmcnt({4*(min(k+7, 24) - k - 1)}) lgkmcnt(0)\ns_barrier')
        if k + 7 < 24: issue(k + 7)
        slot = k % 8
        for t in range(2):
            for Q in range(4):
                kind, b = WB(m, t, 2*c + (Q >> 1))
                ad = (AT0, AT1)[t] if slot < 4 else (AT0+2, 98)[t]
                A(f'ds_read_b64_tr_b16 {vr(b + 2*(Q & 1), 2, kind)}, v{ad} offset:{(slot % 4)*16384 + Q*4096}')
    A('s_waitcnt lgkmcnt(0)\ns_barrier')

def WB(m, t, ks):
    o = (t*16 + ks) * 4
    return {'Q': ('a', o), 'K': ('a', 128 + o), 'V': ('v', 128 + o)}[m]

def phase_b1(A, bail):
    ACC, XB, PK, AX, POIS, AWV = 0, 48, 80, 108, 112, 109
    acc = lambda m, t, kt: ACC + ('QKV'.index(m)*4 + t*2 + kt) * 4
    srd(A, S_X, P_BX, 0x200000)
    srd(A, S_Y, P_WQKV, 512*3072)
    def xdma():
        for r in range(8):
            A(f's_add_u32 m0, s{S_M0}, {r*XST}\ns_add_u32 s{S_T}, s{S_A}, {r*1024}')
            A(f'buffer_load_dwordx4 v{L16}, {sr(S_X,4)}, s{S_T} offen lds')
    A(f"""
    v_and_b32 v1, 15, v{LANE}
    v_mul_u32_u24 v{AX}, {XST}, v1
    v_lshrrev_b32 v1, 4, v{LANE}
    v_lshl_add_u32 v{AX}, v1, 4, v{AX}
    v_lshrrev_b32 v1, 1, v{LANE}
    v_mul_u32_u24 v{AWV}, 3072, v1
    v_and_b32 v1, 1, v{LANE}
    v_lshl_add_u32 v{AWV}, v1, 4, v{AWV}
    s_mov_b32 s{S_SEG}, s{S_I}
    s_mul_i32 s{S_M0}, s{S_WAVE}, {8*XST}
    s_lshl_b32 s{S_A}, s{S_SEG}, 15
    s_lshl_b32 s{S_T}, s{S_WAVE}, 13
    s_add_u32 s{S_A}, s{S_A}, s{S_T}
    s_mov_b32 s{S_CNT}, 0
    """)
    for i in range(4): A(f'v_mov_b32 v{POIS+i}, -1')
    xdma()
    spin(A, 'init', f'global_load_dword v{VT}, v{VZ}, {sr(P_DBG,2)} offset:{DBG_INIT} sc1', f'v_cmp_gt_u32 vcc, 0x100, v{VT}', bail)
    Lp, Lnf, Lnw = A.label('b1'), A.label('b1nf'), A.label('b1nw')
    A(f"""
    {Lp}:
    s_waitcnt vmcnt(7)
    s_barrier
    s_add_u32 s{S_A}, s{S_A}, {7*32768}
    s_bitcmp1_b32 s{S_CNT}, 0
    s_cselect_b32 s{S_T}, -1, 1
    s_mul_i32 s{S_T}, s{S_T}, {XBUF}
    s_add_u32 s{S_M0}, s{S_M0}, s{S_T}
    """)
    xdma()
    A(f's_cmp_lt_u32 s{S_CNT}, 2\ns_cbranch_scc1 {Lnf}')
    A(f's_lshl_b32 s{S_B}, s{S_SEG}, 2\ns_add_u32 s{S_B}, s{S_B}, s{S_HOFF}\ns_add_u32 s{S_B}, s{S_B}, {WS_F1 - 14*4}')
    set_flag(A, S_B)
    A(f'{Lnf}:')
    A(f"""
    s_sub_u32 s{S_B}, s{S_CNT}, 1
    s_cmp_gt_u32 s{S_B}, 2
    s_cbranch_scc1 {Lnw}
    s_mul_i32 s{S_D}, s{S_B}, {AWM}
    s_lshl_b32 s{S_T}, s{S_WAVE}, 12
    s_add_u32 s{S_D}, s{S_D}, s{S_T}
    s_lshl_b32 s{S_B}, s{S_B}, 10
    s_lshr_b32 s{S_T}, s{S_HOFF}, 3
    s_add_u32 s{S_B}, s{S_B}, s{S_T}
    s_mul_i32 s{S_T}, s{S_WAVE}, {128*3072}
    s_add_u32 s{S_B}, s{S_B}, s{S_T}
    """)
    for j in range(4):
        A(f's_add_u32 m0, s{S_D}, {L_AW + j*1024}\ns_add_u32 s{S_T}, s{S_B}, {j*32*3072}')
        A(f'buffer_load_dwordx4 v{AWV}, {sr(S_Y,4)}, s{S_T} offen lds')
    A(f'{Lnw}:')
    xr = lambda ks: [dsr(XB + (ks % 4)*8 + 4*kt, AX, kt*16*XST + 64*ks) for kt in range(2)]
    for ks in range(3):
        for x in xr(ks): A(x)
    for ks in range(16):
        A(f's_waitcnt lgkmcnt({2*min(2, 15-ks)})')
        ms = []
        for kt in range(2):
            X = ('v', XB + (ks % 4)*8 + 4*kt)
            for t in range(2):
                for m in 'QK': ms.append(mfk(acc(m,t,kt), WB(m,t,ks), X, None if ks == 0 else acc(m,t,kt)))
                ms.append(mfk(acc('V',t,kt), X, WB('V',t,ks), None if ks == 0 else acc('V',t,kt)))
        F = {}
        if ks + 3 < 16: F = {1: [xr(ks+3)[0]], 3: [xr(ks+3)[1]]}
        A.weave(ms, F)
    A(f"""
    s_bitcmp1_b32 s{S_CNT}, 0
    s_cselect_b32 s{S_T}, -1, 1
    s_mul_i32 s{S_T}, s{S_T}, {XBUF}
    v_add_u32 v{AX}, s{S_T}, v{AX}
    s_lshl_b32 s{S_B}, s{S_H}, 6
    s_add_u32 s{S_B}, s{S_B}, s{S_SEG}
    s_lshl_b32 s{S_T}, s{S_WAVE}, 10
    s_lshl_b32 s{S_D}, s{S_B}, 13
    s_add_u32 s{S_D}, s{S_D}, s{S_T}
    s_add_u32 s{S_D}, s{S_D}, {WS_QX}
    s_lshl_b32 s{S_E}, s{S_B}, 14
    s_add_u32 s{S_E}, s{S_E}, s{S_T}
    s_lshl_b32 s{S_B}, s{S_B}, 12
    s_add_u32 s{S_B}, s{S_B}, s{S_T}
    s_add_u32 s{S_B}, s{S_B}, {WS_KVM}
    s_add_u32 s{S_F}, s{S_E}, s{S_T}
    s_add_u32 s{S_F}, s{S_F}, 8192
    buffer_store_dwordx4 {vr(POIS,4)}, v{L16}, {ws}, s{S_B} offen sc1
    """)
    for kt in range(2):
        for r in range(4): A(f'v_cvt_pk_bf16_f32 v{PK+4*kt+r}, v{acc("Q",0,kt)+r}, v{acc("Q",1,kt)+r}')
        A(f'buffer_store_dwordx4 {vr(PK+4*kt,4)}, v{L16}, {ws}, s{S_D} offen\ns_add_u32 s{S_D}, s{S_D}, 4096')
    for kt in range(2):
        for t in range(2):
            for r in range(4): A(f'v_mul_f32 v{acc("K",t,kt)+r}, s{S_C}, v{acc("K",t,kt)+r}')
        for r in range(4): A(f'v_cvt_pk_bf16_f32 v{PK+8+4*kt+r}, v{acc("K",0,kt)+r}, v{acc("K",1,kt)+r}')
        A(f'buffer_store_dwordx4 {vr(PK+8+4*kt,4)}, v{L16}, {ws}, s{S_E} offen sc1\ns_add_u32 s{S_E}, s{S_E}, 4096')
    for t in range(2):
        for kt in range(2):
            for hf in range(2): A(f'v_cvt_pk_bf16_f32 v{PK+16+4*t+2*kt+hf}, v{acc("V",t,kt)+2*hf}, v{acc("V",t,kt)+2*hf+1}')
        A(f'buffer_store_dwordx4 {vr(PK+16+4*t,4)}, v{L16}, {ws}, s{S_F} offen offset:{t*1024} sc1')
    A(f"""
    s_add_u32 s{S_CNT}, s{S_CNT}, 1
    s_add_u32 s{S_SEG}, s{S_SEG}, 7
    s_cmp_lt_u32 s{S_SEG}, 64
    s_cbranch_scc1 {Lp}
    s_waitcnt vmcnt(0)
    s_barrier
    """)
    for back in (14, 7):
        A(f's_lshl_b32 s{S_B}, s{S_SEG}, 2\ns_add_u32 s{S_B}, s{S_B}, s{S_HOFF}\ns_add_u32 s{S_B}, s{S_B}, {WS_F1 - back*4}')
        set_flag(A, S_B)

L_AQ = 0
L_AM = 0x2800
L_AO = 0x5000
def phase_a1(A, bail):
    AT, XO, XB, DQ, DV, PK = 0, 1, 8, 40, 56, 72
    A(f"""
    v_bfe_u32 v2, v{LANE}, 4, 1                ; G&1
    v_mul_u32_u24 v{AT}, {AWM}, v2
    v_lshrrev_b32 v2, 5, v{LANE}
    v_lshlrev_b32 v3, 8, v2
    v_and_b32 v4, 15, v{LANE}
    v_lshl_add_u32 v3, v4, 3, v3               ; r*32 + c*8
    v_add_u32 v3, {L_AW}, v3
    v_add_u32 v{AT}, v3, v{AT}
    v_add_u32 v3, {2*AWM}, v3
    """)
    for s in range(32):
        for q in range(2):
            A(f'ds_read_b64_tr_b16 {vr(4*s + 2*q, 2, "a")}, v{AT} offset:{s*512 + q*128}')
            A(f'ds_read_b64_tr_b16 {vr(128 + 4*s + 2*q, 2, "a")}, v3 offset:{s*512 + q*128}')
    srd(A, S_X, P_AX, 0x200000)
    A(f"""
    v_and_b32 v4, 31, v{LANE}
    v_lshlrev_b32 v{XO}, 10, v4
    v_lshl_add_u32 v{XO}, v2, 4, v{XO}
    s_mov_b32 s{S_EXA}, 0xffff0000
    s_mov_b32 s{S_EXA+1}, 0xffff0000
    s_mov_b32 s{S_E}, 0x3eb8aa3b               ; 16^-0.5 * log2(e)
    s_mov_b32 s{S_CNT}, s{S_WAVE}
    s_waitcnt lgkmcnt(0)
    s_barrier
    """)
    Lp, Ld = A.label('a1'), A.label('a1d')
    A(f"""
    {Lp}:
    s_mul_i32 s{S_SEG}, s{S_CNT}, 7
    s_add_u32 s{S_SEG}, s{S_SEG}, s{S_I}
    s_cmp_ge_u32 s{S_SEG}, 64
    s_cbranch_scc1 {Ld}
    s_lshl_b32 s{S_A}, s{S_SEG}, 15
    """)
    xl = lambda s: f'buffer_load_dwordx4 {vr(XB + (s % 8)*4, 4)}, v{XO}, {sr(S_X,4)}, s{S_A} offen offset:{32*s}'
    for s in range(7): A(xl(s))
    for s in range(32):
        A(f's_waitcnt vmcnt({min(6, 31-s)})')
        A(mf3232(DQ, 4*s, XB + (s % 8)*4, None if s == 0 else DQ, ka='a'))
        if s + 7 < 32: A(xl(s+7))
        A(mf3232(DV, XB + (s % 8)*4, 128 + 4*s, None if s == 0 else DV, kb='a'))
    A(f"""
    s_lshl_b32 s{S_B}, s{S_H}, 6
    s_add_u32 s{S_B}, s{S_B}, s{S_SEG}
    s_lshl_b32 s{S_B}, s{S_B}, 11
    s_add_u32 s{S_B}, s{S_B}, {WS_AKV}
    s_lshl_b32 s{S_T}, s{S_CNT}, 10
    v_add_u32 v2, s{S_T}, v{L16}
    """)
    for r in range(8): A(f'v_mul_f32 v{DQ+r}, s{S_E}, v{DQ+r}')
    for r in range(8): A(f'v_cvt_pk_bf16_f32 v{PK+r}, v{DQ+2*r}, v{DQ+2*r+1}')
    A(f'ds_write_b128 v2, {vr(PK,4)} offset:{L_AQ}')
    A(f'buffer_store_dwordx4 {vr(PK+4,4)}, v{L16}, {ws}, s{S_B} offen sc1')
    for r in range(4): A(f'v_cvt_pk_bf16_f32 v{PK+8+r}, v{DV+2*r}, v{DV+2*r+1}')
    A(f's_mov_b64 exec, {sr(S_EXA,2)}')
    for r in range(4): A(f'v_cvt_pk_bf16_f32 v{PK+8+r}, v{DV+8+2*r}, v{DV+8+2*r+1}')
    A('s_mov_b64 exec, -1')
    A(f'buffer_store_dwordx4 {vr(PK+8,4)}, v{L16}, {ws}, s{S_B} offen offset:1024 sc1')
    A(f"""
    s_add_u32 s{S_CNT}, s{S_CNT}, 4
    s_branch {Lp}
    {Ld}:
    s_waitcnt vmcnt(0) lgkmcnt(0)
    s_barrier
    s_lshl_b32 s{S_B}, s{S_H}, 5
    s_lshl_b32 s{S_T}, s{S_I}, 2
    s_add_u32 s{S_D}, s{S_B}, {WS_FA}
    s_add_u32 s{S_B}, s{S_D}, s{S_T}
    """)
    set_flag(A, S_B)
    A(f'v_min_u32 v2, 6, v{LANE}\nv_lshlrev_b32 v2, 2, v2')
    spin(A, 'fa', f'buffer_load_dword v{VT}, v2, {ws}, s{S_D} offen sc1', f'v_cmp_ne_u32 vcc, 1, v{VT}', bail)

def phase_a2(A, bail):
    KR, VR = 0, 64
    Q, S0, S1, NM, O, E, PB, MX, AD = 0, 8, 24, 40, 56, 72, 88, 96, 97
    A(f"""
    v_mov_b32 v2, 0x3f803f80
    s_lshl_b32 s{S_B}, s{S_H}, 17
    s_lshl_b32 s{S_T}, s{S_WAVE}, 15
    s_add_u32 s{S_B}, s{S_B}, s{S_T}
    s_add_u32 s{S_B}, s{S_B}, {WS_AKV}
    s_not_b64 {sr(S_EXB,2)}, {sr(S_EXA,2)}
    """)
    for r in range(128): A(f'v_accvgpr_write_b32 a{VR+r}, v2')
    for kt in range(16):
        A(f'buffer_load_dwordx4 {vr(KR+4*kt,4,"a")}, v{L16}, {ws}, s{S_B} offen offset:{(kt & 1)*2048} sc1')
        A(f's_mov_b64 exec, {sr(S_EXB,2)}')
        for o in range(2):
            A(f'buffer_load_dwordx4 {vr(VR+8*kt+4*o,4,"a")}, v{L16}, {ws}, s{S_B} offen offset:{(kt & 1)*2048 + 1024 + 256*o} sc1')
        A('s_mov_b64 exec, -1')
        if kt & 1: A(f's_add_u32 s{S_B}, s{S_B}, 4096')
    A(f"""
    s_cmp_eq_u32 s{S_I}, 0
    s_cselect_b32 s{S_D}, 10, 9
    s_mov_b32 s{S_CNT}, 0
    v_mov_b32 v{AD}, v{L16}
    s_mul_i32 s{S_T}, s{S_WAVE}, 2560
    v_lshlrev_b32 v{AD+1}, 2, v{LANE}
    v_add_u32 v{AD+2}, s{S_T}, v{AD+1}
    s_waitcnt vmcnt(0)
    """)
    Lp = A.label('a2m')
    A(f'{Lp}:\nds_read_b128 {vr(Q,4)}, v{AD} offset:{L_AQ}\ns_waitcnt lgkmcnt(0)')
    Sb = (S0, S1, NM, O)
    def mx(s, first):
        out = []
        for r in range(0, 16, 2):
            out.append(f'v_max_f32 v{MX}, v{s}, v{s+1}' if first and r == 0 else f'v_max3_f32 v{MX}, v{MX}, v{s+r}, v{s+r+1}')
        return out
    for kt in range(16):
        A(mf3232(Sb[kt % 4], KR+4*kt, Q, None, ka='a'))
        if kt >= 2:
            for x in mx(Sb[(kt-2) % 4], kt == 2): A(x)
    for kt in (14, 15):
        for x in mx(Sb[kt % 4], False): A(x)
    A(f"""
    v_mov_b32 v{E}, v{MX}
    v_permlane32_swap_b32 v{E}, v{MX}
    v_max_f32 v{MX}, v{MX}, v{E}
    ds_write_b32 v{AD+2}, v{MX} offset:{L_AM}
    v_add_u32 v{AD}, 1024, v{AD}
    v_add_u32 v{AD+2}, 256, v{AD+2}
    s_add_u32 s{S_CNT}, s{S_CNT}, 1
    s_cmp_lt_u32 s{S_CNT}, s{S_D}
    s_cbranch_scc1 {Lp}
    s_waitcnt lgkmcnt(0)
    s_barrier
    s_mov_b32 s{S_CNT}, 0
    v_mov_b32 v{AD}, v{L16}
    s_mul_i32 s{S_T}, s{S_WAVE}, {10*9*256}
    s_add_u32 s{S_T}, s{S_T}, {L_AO}
    v_add_u32 v{AD+2}, s{S_T}, v{AD+1}
    """)
    Lp = A.label('a2p')
    A(f'{Lp}:\nds_read_b128 {vr(Q,4)}, v{AD} offset:{L_AQ}')
    for w in range(4): A(f'ds_read_b32 v{E+w}, v{AD+1} offset:{L_AM + w*2560}')
    A(f's_waitcnt lgkmcnt(0)\nv_max3_f32 v{MX}, v{E}, v{E+1}, v{E+2}\nv_max_f32 v{MX}, v{MX}, v{E+3}')
    for r in range(16): A(f'v_sub_f32 v{NM+r}, 0, v{MX}')
    Sb = (S0, S1)
    A(mf3232(S0, KR, Q, NM, ka='a'))
    for kt in range(16):
        s = Sb[kt % 2]
        if kt + 1 < 16: A(mf3232(Sb[(kt+1) % 2], KR+4*(kt+1), Q, NM, ka='a'))
        for r in range(8): A(f'v_exp_f32 v{E+r}, v{s+r}')
        if kt > 0: A(mf3232(O, VR+8*(kt-1)+4, PB+4, O, ka='a'))
        for r in range(4): A(f'v_cvt_pk_bf16_f32 v{PB+r}, v{E+2*r}, v{E+2*r+1}')
        for r in range(8, 12): A(f'v_exp_f32 v{E+r}, v{s+r}')
        A(mf3232(O, VR+8*kt, PB, None if kt == 0 else O, ka='a'))
        for r in range(12, 16): A(f'v_exp_f32 v{E+r}, v{s+r}')
        for r in range(4, 8): A(f'v_cvt_pk_bf16_f32 v{PB+r}, v{E+2*r}, v{E+2*r+1}')
    A(mf3232(O, VR+8*15+4, PB+4, O, ka='a'))
    A(f'v_add_u32 v{AD}, 1024, v{AD}\nv_add_u32 v{AD+1}, 256, v{AD+1}')
    for r in range(9): A(f'ds_write_b32 v{AD+2}, v{O+r} offset:{r*256}')
    A(f"""
    v_add_u32 v{AD+2}, {9*256}, v{AD+2}
    s_add_u32 s{S_CNT}, s{S_CNT}, 1
    s_cmp_lt_u32 s{S_CNT}, s{S_D}
    s_cbranch_scc1 {Lp}
    s_waitcnt lgkmcnt(0)
    s_barrier
    s_mov_b32 s{S_CNT}, s{S_WAVE}
    """)
    Lp, Ld = A.label('a2c'), A.label('a2d')
    A(f"""
    {Lp}:
    s_cmp_ge_u32 s{S_CNT}, s{S_D}
    s_cbranch_scc1 {Ld}
    s_mul_i32 s{S_T}, s{S_CNT}, {9*256}
    s_add_u32 s{S_T}, s{S_T}, {L_AO}
    v_lshlrev_b32 v{AD}, 2, v{LANE}
    v_add_u32 v{AD}, s{S_T}, v{AD}
    v_add_u32 v{AD+1}, {2*10*9*256}, v{AD}
    s_mul_i32 s{S_B}, s{S_CNT}, 7
    s_add_u32 s{S_B}, s{S_B}, s{S_I}
    s_lshl_b32 s{S_B}, s{S_B}, 5
    s_add_u32 s{S_B}, s{S_B}, s{S_H}
    s_lshl_b32 s{S_B}, s{S_B}, 10
    s_add_u32 s{S_B}, s{S_B}, {WS_AO}
    """)
    for w in range(4):
        for r in range(9): A(f'ds_read_b32 v{8+9*w+r}, v{AD + (w >> 1)} offset:{(w & 1)*10*9*256 + r*256}')
        if w: A('s_waitcnt lgkmcnt(0)')
        if w:
            for r in range(9): A(f'v_add_f32 v{8+r}, v{8+r}, v{8+9*w+r}')
    A('v_rcp_f32 v16, v16')
    for r in range(8): A(f'v_mul_f32 v{8+r}, v16, v{8+r}')
    for r in range(4): A(f'v_cvt_pk_bf16_f32 v{48+r}, v{8+2*r}, v{9+2*r}')
    A(f"""
    buffer_store_dwordx4 v[48:51], v{L16}, {ws}, s{S_B} offen sc1
    s_add_u32 s{S_CNT}, s{S_CNT}, 4
    s_branch {Lp}
    {Ld}:
    s_waitcnt vmcnt(0)
    s_barrier
    s_lshl_b32 s{S_F}, s{S_I}, 7
    s_add_u32 s{S_F}, s{S_F}, {WS_FO}
    s_lshl_b32 s{S_T}, s{S_H}, 2
    s_add_u32 s{S_B}, s{S_F}, s{S_T}
    """)
    set_flag(A, S_B)

def phase_a3(A, bail):
    OB, D, PK = 8, 40, 56
    srd(A, S_X, P_AWO, 512*1024)
    srd(A, S_Y, P_OUT, 2048*2048)
    A(f"""
    v_lshrrev_b32 v1, 2, v{LANE}
    v_lshlrev_b32 v1, 10, v1
    v_and_b32 v2, 3, v{LANE}
    v_lshl_add_u32 v1, v2, 4, v1
    s_lshr_b32 s{S_E}, s{S_H}, 1
    s_lshl_b32 s{S_E}, s{S_E}, 6
    s_lshl_b32 s{S_T}, s{S_WAVE}, 17
    s_add_u32 s{S_A}, s{S_E}, s{S_T}
    s_lshl_b32 s{S_M0}, s{S_WAVE}, 13
    """)
    for j in range(8):
        A(f's_add_u32 m0, s{S_M0}, {j*1024}\ns_add_u32 s{S_T}, s{S_A}, {j*16*1024}')
        A(f'buffer_load_dwordx4 v1, {sr(S_X,4)}, s{S_T} offen lds')
    A(f"""
    v_lshrrev_b32 v3, 5, v{LANE}
    v_bfe_u32 v4, v{LANE}, 2, 2
    v_lshl_add_u32 v4, v3, 2, v4
    v_lshlrev_b32 v4, 6, v4
    v_and_b32 v5, 1, v{LANE}
    v_lshl_add_u32 v4, v5, 5, v4
    v_bfe_u32 v5, v{LANE}, 4, 1
    v_lshl_add_u32 v4, v5, 4, v4
    v_bfe_u32 v5, v{LANE}, 1, 1
    v_lshl_add_u32 v4, v5, 3, v4
    v_and_b32 v5, 31, v{LANE}
    v_lshlrev_b32 v5, 11, v5
    v_lshl_add_u32 v5, v3, 5, v5
    s_waitcnt vmcnt(0)
    s_barrier
    """)
    for s in range(32):
        for q in range(2): A(f'ds_read_b64_tr_b16 {vr(4*s + 2*q, 2, "a")}, v4 offset:{s*1024 + q*512}')
    A(f'v_and_b32 v2, 31, v{LANE}\nv_lshlrev_b32 v2, 2, v2')
    spin(A, 'fo', f'buffer_load_dword v{VT}, v2, {ws}, s{S_F} offen sc1', f'v_cmp_ne_u32 vcc, 1, v{VT}', bail)
    Lp, Ld = A.label('a3'), A.label('a3d')
    A(f"""
    s_and_b32 s{S_CNT}, s{S_H}, 1
    s_lshl_b32 s{S_T}, s{S_WAVE}, 1
    s_add_u32 s{S_CNT}, s{S_CNT}, s{S_T}
    s_waitcnt lgkmcnt(0)
    {Lp}:
    s_mul_i32 s{S_SEG}, s{S_CNT}, 7
    s_add_u32 s{S_SEG}, s{S_SEG}, s{S_I}
    s_cmp_ge_u32 s{S_SEG}, 64
    s_cbranch_scc1 {Ld}
    s_lshl_b32 s{S_A}, s{S_SEG}, 15
    s_add_u32 s{S_A}, s{S_A}, {WS_AO}
    """)
    def ol(s):
        x = f'buffer_load_dwordx4 {vr(OB + (s % 8)*4, 4)}, v{L16}, {ws}, s{S_A} offen offset:{(s % 4)*1024} sc1'
        return x + (f'\ns_add_u32 s{S_A}, s{S_A}, 4096' if s % 4 == 3 else '')
    for s in range(7): A(ol(s))
    for s in range(32):
        A(f's_waitcnt vmcnt({min(6, 31-s)})')
        A(mf3232(D, 4*s, OB + (s % 8)*4, None if s == 0 else D, ka='a'))
        if s + 7 < 32: A(ol(s+7))
    A(f's_lshl_b32 s{S_B}, s{S_SEG}, 16\ns_add_u32 s{S_B}, s{S_B}, s{S_E}')
    for r in range(8): A(f'v_cvt_pk_bf16_f32 v{PK+r}, v{D+2*r}, v{D+2*r+1}')
    A(f"""
    buffer_store_dwordx4 {vr(PK,4)}, v5, {sr(S_Y,4)}, s{S_B} offen
    buffer_store_dwordx4 {vr(PK+4,4)}, v5, {sr(S_Y,4)}, s{S_B} offen offset:16
    s_add_u32 s{S_CNT}, s{S_CNT}, 8
    s_branch {Lp}
    {Ld}:
    s_barrier
    """)

def phase_b2(A, bail):
    QR, KR, VR, KM, KVM = 0, 32, 64, 72, 88
    S00, S01, S11, SM0, SM1 = 128, 132, 136, 140, 144
    P0, P1, PM, ONE, LL, OO, PK = 148, 152, 156, 164, 168, 176, 192
    ACC = 128
    AQW, AQR, APS, APL, AOS, SEL, MSK, T0, T1 = 92, 93, 94, 95, 96, 100, 97, 98, 99
    L_K, L_OX = 0x20000, 0x21000
    A(f"""
    v_lshrrev_b32 v1, 4, v{LANE}               ; g
    v_and_b32 v2, 15, v{LANE}                  ; n
    v_lshlrev_b32 v3, 10, v1
    v_lshl_add_u32 v3, v2, 4, v3
    s_lshl_b32 s{S_T}, s{S_WAVE}, 8
    s_add_u32 s{S_A}, s{S_HWO}, s{S_T}
    s_lshl_b32 s{S_M0}, s{S_WAVE}, 15
    """)
    for j in range(32):
        A(f's_add_u32 m0, s{S_M0}, {j*1024}\ns_add_u32 s{S_T}, s{S_A}, {j*4096}')
        A(f'buffer_load_dwordx4 v3, {sr(S_WO,4)}, s{S_T} offen lds')
    A(f"""
    v_mov_b32 v{APL}, v3
    v_lshrrev_b32 v4, 2, v{LANE}
    v_lshlrev_b32 v4, 8, v4
    v_and_b32 v5, 3, v{LANE}
    v_lshl_add_u32 v4, v5, 6, v4
    v_add_u32 v4, s{S_M0}, v4                  ; (4g+r)*256 + a*64
    s_lshl_b32 s{S_T}, s{S_WAVE}, 9
    s_add_u32 s{S_T}, s{S_T}, {L_K}
    v_lshlrev_b32 v{AQW}, 7, v1
    v_lshl_add_u32 v{AQW}, v2, 2, v{AQW}
    v_add_u32 v{AQW}, s{S_T}, v{AQW}
    v_lshrrev_b32 v6, 2, v2
    v_and_b32 v7, 1, v2
    v_lshl_add_u32 v6, v6, 1, v7               ; m
    v_lshlrev_b32 v{AQR}, 6, v6
    v_lshl_add_u32 v{AQR}, v1, 4, v{AQR}
    v_add_u32 v{AQR}, {L_K}, v{AQR}
    v_lshlrev_b32 v{APS}, 17, v1
    v_lshl_add_u32 v{APS}, v2, 4, v{APS}
    v_lshlrev_b32 v{AOS}, 6, v1
    v_lshl_add_u32 v{AOS}, v2, 3, v{AOS}
    v_lshlrev_b32 v6, 2, v1
    v_sub_u32 v{MSK}, v2, v6
    v_lshrrev_b32 v6, 1, v2
    v_mov_b32 v8, 0x3f80
    v_lshlrev_b32 v7, 4, v7
    v_lshlrev_b32 v8, v7, v8
    s_mov_b32 s{S_EXA}, 0x00ff00ff
    s_mov_b32 s{S_EXA+1}, 0x00ff00ff
    """)
    for d in range(4): A(f'v_cmp_eq_u32 vcc, {d}, v6\nv_cndmask_b32 v{SEL+d}, v{VZ}, v8, vcc')
    A('s_waitcnt vmcnt(0)')
    for T in range(8):
        for kk in range(4):
            for t in range(2):
                A(f'ds_read_b64_tr_b16 {vr((T*4 + kk)*4 + 2*t, 2, "a")}, v4 offset:{(32*kk + 16*t)*256 + T*8}')
    A(f'v_add_u32 v108, {L_OX}, v{L16}\ns_lshl_b32 s{S_T}, s{S_WAVE}, 10\nv_add_u32 v109, s{S_T}, v108')
    A(f'v_and_b32 v110, 31, v{LANE}\nv_lshlrev_b32 v110, 2, v110')
    A(f's_mov_b32 s{S_SEG}, s{S_I}\ns_waitcnt lgkmcnt(0)')
    Lp = A.label('b2')
    A(f"""
    {Lp}:
    s_lshl_b32 s{S_B}, s{S_H}, 6
    s_add_u32 s{S_B}, s{S_B}, s{S_SEG}
    s_lshl_b32 s{S_D}, s{S_B}, 13
    s_add_u32 s{S_D}, s{S_D}, {WS_QX}
    s_lshl_b32 s{S_E}, s{S_B}, 14
    s_lshl_b32 s{S_T}, s{S_WAVE}, 10
    s_lshl_b32 s{S_B}, s{S_B}, 12
    s_add_u32 s{S_B}, s{S_B}, s{S_T}
    s_add_u32 s{S_B}, s{S_B}, {WS_KVM}
    s_lshl_b32 s{S_F}, s{S_T}, 1
    s_add_u32 s{S_F}, s{S_F}, s{S_E}
    s_add_u32 s{S_F}, s{S_F}, 8192
    """)
    for half in range(2):
        for kk in range(4): A(f'buffer_load_dwordx4 {vr(QR+16*half+4*kk,4)}, v{L16}, {ws}, s{S_D} offen offset:{kk*1024} sc1')
        for kk in range(4): A(f'buffer_load_dwordx4 {vr(KR+16*half+4*kk,4)}, v{L16}, {ws}, s{S_E} offen offset:{kk*1024} sc1')
        if half == 0: A(f's_add_u32 s{S_D}, s{S_D}, 4096\ns_add_u32 s{S_E}, s{S_E}, 4096')
    for t in range(2): A(f'buffer_load_dwordx4 {vr(VR+4*t,4)}, v{L16}, {ws}, s{S_F} offen offset:{t*1024} sc1')
    for r in range(4): A(f'v_mov_b32 v{ONE+r}, 0x3f803f80')
    for r in (P0+2, P0+3, PM+1, PM+2, PM+5, PM+6): A(f'v_mov_b32 v{r}, 0')
    A(f'v_mov_b32 v{T1}, 0xff800000\ns_waitcnt vmcnt(0)')
    for d, kt, qt in ((S00, 0, 0), (S11, 1, 1), (S01, 0, 1)):
        for kk in range(4): A(mf32(d, KR+16*kt+4*kk, QR+16*qt+4*kk, None if kk == 0 else d))
    for r in range(4):
        A(f'v_cmp_ge_i32 vcc, v{MSK}, {r}' if False else f'v_cmp_le_i32 vcc, {r}, v{MSK}')
        A(f'v_cndmask_b32 v{S00+r}, v{T1}, v{S00+r}, vcc\nv_cndmask_b32 v{S11+r}, v{T1}, v{S11+r}, vcc')
    Lw = A.label('b2w')
    A(f"""
    {Lw}:
    buffer_load_dwordx4 {vr(KVM,4)}, v{L16}, {ws}, s{S_B} offen sc1
    s_sub_u32 s{S_BUD}, s{S_BUD}, 1
    s_cbranch_scc1 {bail}
    s_waitcnt vmcnt(0)
    v_max3_u32 v{T0}, v{KVM}, v{KVM+1}, v{KVM+2}
    v_max_u32 v{T0}, v{T0}, v{KVM+3}
    v_cmp_eq_u32 vcc, -1, v{T0}
    s_cbranch_vccz {Lw}_ok
    s_sleep 4
    s_branch {Lw}
    {Lw}_ok:
    ds_write2_b32 v{AQW}, v{KVM}, v{KVM+1} offset0:0 offset1:16
    s_waitcnt lgkmcnt(0)
    s_barrier
    """)
    for kk in range(4): A(dsr(KM+4*kk, AQR, kk*512))
    for kk in range(4):
        A(f's_waitcnt lgkmcnt({3-kk})')
        A(mf32(SM0, KM+4*kk, QR+4*kk, None if kk == 0 else SM0)); A(mf32(SM1, KM+4*kk, QR+16+4*kk, None if kk == 0 else SM1))
    for qt, xs, sm, P in ((0, [S00+r for r in range(4)], SM0, P0), (1, [S01+r for r in range(4)] + [S11+r for r in range(4)], SM1, P1)):
        A(f'v_mul_f32 v{sm}, s{S_C}, v{sm}\nv_mul_f32 v{sm+1}, s{S_C}, v{sm+1}\nv_max_f32 v{T0}, v{sm}, v{sm+1}')
        for k in range(0, len(xs), 2): A(f'v_max3_f32 v{T0}, v{T0}, v{xs[k]}, v{xs[k+1]}')
        for sw in ('32', '16'):
            A(f'v_mov_b32 v{T1}, v{T0}\nv_permlane{sw}_swap_b32 v{T1}, v{T0}\nv_max_f32 v{T0}, v{T0}, v{T1}')
        for x in xs + [sm, sm+1]: A(f'v_sub_f32 v{x}, v{x}, v{T0}')
        for x in xs + [sm, sm+1]: A(f'v_exp_f32 v{x}, v{x}')
        for k in range(0, len(xs), 2): A(f'v_cvt_pk_bf16_f32 v{P+k//2}, v{xs[k]}, v{xs[k+1]}')
        A(f'v_cvt_pk_bf16_f32 v{PM+4*qt}, v{sm}, v{sm+1}\nv_cvt_pk_bf16_f32 v{PM+4*qt+3}, v{sm}, v{sm+1}')
        A(mf32(LL+4*qt, ONE, P, None)); A(mf32(OO+8*qt, VR, P, None)); A(mf32(OO+8*qt+4, VR+4, P, None))
        A(mf16(LL+4*qt, ONE, PM+4*qt, LL+4*qt)); A(mf16(OO+8*qt, KVM+2, PM+4*qt, OO+8*qt)); A(mf16(OO+8*qt+4, KVM+2, PM+4*qt+2, OO+8*qt+4))
    for qt in range(2):
        A(f'v_rcp_f32 v{T0}, v{LL+4*qt}')
        for r in range(8): A(f'v_mul_f32 v{OO+8*qt+r}, v{T0}, v{OO+8*qt+r}')
        for r in range(4): A(f'v_cvt_pk_bf16_f32 v{PK+4*qt+r}, v{OO+8*qt+2*r}, v{OO+8*qt+2*r+1}')
        A(f'ds_write_b128 v109, {vr(PK+4*qt,4)} offset:{qt*4096}')
    A('s_waitcnt lgkmcnt(0)\ns_barrier')
    for z in range(8): A(dsr(QR+4*z, 108, z*1024))
    A(f"""
    s_lshl_b32 s{S_D}, s{S_SEG}, 20
    s_add_u32 s{S_D}, s{S_D}, {WS_FP}
    s_lshl_b32 s{S_T}, s{S_WAVE}, 8
    s_add_u32 s{S_D}, s{S_D}, s{S_T}
    s_lshl_b32 s{S_T}, s{S_H}, 10
    s_add_u32 s{S_E}, s{S_D}, s{S_T}
    s_lshl_b32 s{S_T}, s{S_H}, 15
    s_add_u32 s{S_D}, s{S_D}, s{S_T}
    """)
    for kt in range(2):
        A(f's_waitcnt lgkmcnt({4*(1-kt)})')
        for kk in range(4):
            for T in range(8):
                d = ACC + (kt*8 + T)*4
                A(mfk(d, ('v', QR+16*kt+4*kk), ('a', (T*4+kk)*4), None if kk == 0 else d))
    for kt in range(2):
        for r in range(4):
            p = KR + (kt*4 + r)*4
            for tp in range(4): A(f'v_cvt_pk_bf16_f32 v{p+tp}, v{ACC+(kt*8+2*tp)*4+r}, v{ACC+(kt*8+2*tp+1)*4+r}')
            A(f's_add_u32 s{S_T}, s{S_E}, {(16*kt + r)*32768}')
            A(f'buffer_store_dwordx4 {vr(p,4)}, v{APS}, {ws}, s{S_T} offen sc1')
    A(f"""
    s_lshl_b32 s{S_F}, s{S_SEG}, 7
    s_add_u32 s{S_F}, s{S_F}, {WS_FF}
    s_lshl_b32 s{S_T}, s{S_H}, 2
    s_add_u32 s{S_B}, s{S_F}, s{S_T}
    s_waitcnt vmcnt(0)
    s_barrier
    """)
    set_flag(A, S_B)
    spin(A, 'ff', f'buffer_load_dword v{VT}, v110, {ws}, s{S_F} offen sc1', f'v_cmp_ne_u32 vcc, 1, v{VT}', bail)
    for p in range(8):
        A(f'buffer_load_dwordx4 {vr(QR+4*p,4)}, v{APL}, {ws}, s{S_D} offen sc1\ns_add_u32 s{S_D}, s{S_D}, 4096')
    A(f"""
    s_lshl_b32 s{S_B}, s{S_SEG}, 5
    s_add_u32 s{S_B}, s{S_B}, s{S_H}
    s_lshl_b32 s{S_B}, s{S_B}, 11
    s_lshl_b32 s{S_T}, s{S_WAVE}, 8
    s_add_u32 s{S_B}, s{S_B}, s{S_T}
    """)
    for p in range(8):
        A(f's_waitcnt vmcnt({7-p})'); A(mf32(ACC, QR+4*p, SEL, None if p == 0 else ACC))
    A(f"""
    v_cvt_pk_bf16_f32 v{ACC}, v{ACC}, v{ACC+1}
    v_cvt_pk_bf16_f32 v{ACC+1}, v{ACC+2}, v{ACC+3}
    s_mov_b64 exec, {sr(S_EXA,2)}
    buffer_store_dwordx2 {vr(ACC,2)}, v{AOS}, {sr(S_Y,4)}, s{S_B} offen offset:1024
    s_mov_b64 exec, -1
    s_add_u32 s{S_SEG}, s{S_SEG}, 7
    s_cmp_lt_u32 s{S_SEG}, 64
    s_cbranch_scc1 {Lp}
    """)

def worker(A, opt):
    bail = 'W_bail'
    A(f"""
    v_and_b32 v{LANE}, 63, v0
    v_lshlrev_b32 v{L16}, 4, v{LANE}
    v_mov_b32 v{VZ}, 0
    s_mov_b32 s{S_C}, 0x3e0293ee               ; 128^-0.5 * log2(e)
    s_mov_b32 s{S_BUD}, 400000
    s_lshl_b32 s{S_HOFF}, s{S_H}, 8
    s_lshl_b32 s{S_HWO}, s{S_H}, 17
    """)
    for s, p in ((S_WQ, P_WQ), (S_WK, P_WK), (S_WV, P_WV), (S_WO, P_WO)): srd(A, s, p, 0x400000)
    st = opt.get('wstamp')
    def stamp(k):
        if st:
            A(f"""
            s_memrealtime s[94:95]
            s_mul_i32 s96, s{S_H}, 7
            s_add_u32 s96, s96, s{S_I}
            s_lshl_b32 s96, s96, 6
            s_add_u32 s96, s96, {WS_STAT + 0x20000 + 4*k}
            s_waitcnt lgkmcnt(0)
            v_mov_b32 v{VT}, s94
            buffer_store_dword v{VT}, v{VZ}, {ws}, s96 offen
            s_waitcnt vmcnt(0)
            """)
    stamp(0)
    prefetch(A)
    load_qkv(A); stamp(1)
    phase_b1(A, bail); stamp(2)
    phase_a1(A, bail); stamp(3)
    phase_a2(A, bail); stamp(4)
    phase_a3(A, bail); stamp(5)
    phase_b2(A, bail); stamp(6)
    A(f'{bail}:\ns_endpgm')
```

```python
import sys
from common import *
import chain, worker
from chain import *
NAME = 'concat_heads__mha_block__memory_aug_recurrent_mem_tr__prompt_kernel'
HEADER = open('concat_heads__mha_block__memory_aug_recurrent_mem_tr__prompt.s.ref').read().split('; Override launch')[0]

def build(opt, name=NAME, aslist=False):
    A = Asm()
    A(f'; @launch {"kernel=" + name + " " if aslist else ""}grid=(256,1,1) block=(256,1,1) lds=163840')
    A(f'.amdgcn_target "amdgcn-amd-amdhsa--gfx950"\n.text\n.globl {name}\n.p2align 8\n.type {name},@function\n{name}:')
    if opt.get('stamp'): A('s_memtime s[62:63]')
    A(f'''
    s_cmp_ge_u32 s2, 256
    s_cbranch_scc1 L_exit
    s_load_dwordx16 s[64:79], s[0:1], 0
    s_load_dwordx8 s[80:87], s[0:1], 64
    s_load_dwordx2 s[88:89], s[0:1], 96
    s_getreg_b32 s{S_XCC}, hwreg(HW_REG_XCC_ID, 0, 3)
    v_lshrrev_b32 v1, 6, v0
    v_mov_b32 v2, 0
    v_mov_b32 v3, 1
    v_readfirstlane_b32 s{S_WAVE}, v1
    s_waitcnt lgkmcnt(0)
    ''')
    srd(A, S_WS, P_WSP, WS_SIZE)
    A(f'''
    s_cmp_eq_u32 s{S_WAVE}, 1
    s_cbranch_scc1 L_clr
    s_cmp_lg_u32 s{S_WAVE}, 0
    s_cbranch_scc1 L_tk
    s_mov_b64 exec, 1
    {"s_and_b32 s18, s2, 7" if opt.get("scramble") is None else "s_lshr_b32 s18, s2, 5"}
    {"s_mov_b32 s18, s" + str(S_XCC) if opt.get("scramble") is None else ""}
    s_mov_b32 s19, 0
    L_try:
    s_lshl_b32 s16, s18, 2
    v_mov_b32 v5, s16
    global_atomic_add v4, v5, v3, {sr(P_DBG,2)} offset:{DBG_TICKET} sc0 sc1
    s_waitcnt vmcnt(0)
    v_readfirstlane_b32 s16, v4
    s_cmp_lt_u32 s16, 32
    s_cbranch_scc1 L_got
    s_add_u32 s18, s18, 1
    s_and_b32 s18, s18, 7
    s_add_u32 s19, s19, 1
    s_cmp_lt_u32 s19, 8
    s_cbranch_scc1 L_try
    s_mov_b32 s18, 8
    L_got:
    s_lshl_b32 s18, s18, 5
    s_add_u32 s16, s16, s18
    v_mov_b32 v4, s16
    ds_write_b32 v2, v4 offset:{L_ROLE}
    s_waitcnt lgkmcnt(0)
    s_mov_b64 exec, -1
    s_branch L_tk
    L_clr:
    v_and_b32 v5, 31, v0
    v_lshlrev_b32 v5, 2, v5
    s_lshl_b32 s16, s2, 7
    s_add_u32 s16, s16, {WS_FLAG}
    buffer_store_dword v2, v5, {sr(S_WS,4)}, s16 offen sc1
    s_waitcnt vmcnt(0)
    s_mov_b64 exec, 1
    global_atomic_add v2, v3, {sr(P_DBG,2)} offset:{DBG_INIT} sc1
    s_mov_b64 exec, -1
    L_tk:
    s_barrier
    ds_read_b32 v4, v2 offset:{L_ROLE}
    s_waitcnt lgkmcnt(0)
    v_readfirstlane_b32 s{S_H}, v4
    s_barrier
    s_cmp_ge_u32 s{S_H}, 256
    s_cbranch_scc1 L_exit
    s_cmp_lt_u32 s{S_H}, 32
    s_cbranch_scc1 L_chain
    s_sub_u32 s{S_T}, s{S_H}, 32
    s_mul_i32 s{S_H}, s{S_T}, 9363
    s_lshr_b32 s{S_H}, s{S_H}, 16               ; /7
    s_mul_i32 s18, s{S_H}, 7
    s_sub_u32 s18, s{S_T}, s18
    s_branch L_worker
    L_exit:
    s_endpgm
    L_chain:
    ''')
    for w in range(1, 4):
        A(f's_cmp_eq_u32 s{S_WAVE}, {w}\ns_cbranch_scc1 C{w}_entry')
    for w in range(4):
        A(f'C{w}_entry:')
        chain_wave(A, w, opt)
    A('L_worker:')
    worker.worker(A, opt)
    out, n = hazard.fix(A.lines, verbose=opt.get('verbose'))
    return HEADER + '\n'.join(out) + KERNEL_TAIL.format(name=name)

if __name__ == '__main__':
    opt = eval(sys.argv[2]) if len(sys.argv) > 2 else {}
    open(sys.argv[1], 'w').write(build(opt))
```

```python
from common import *

S_WS   = 4
S_H    = 16
S_WAVE = 17
S_STEP = 18
S_T    = 19
S_WQ, S_WK, S_WV, S_WO = 20, 24, 28, 32
S_HOFF = 36
S_HWO  = 37
S_KV   = 38
S_PUB  = 39
S_PST  = 40
S_PST1 = 41
S_PLD  = 42
S_PLD1 = 43
S_MST  = 44
S_MLD  = 45
S_PPO  = 46
S_MPO  = 47
S_BUD  = 48
S_C    = 49
S_EXO  = 50
S_EXM  = 52
S_R1   = 54
S_R2   = 55
S_T0   = 56
S_T1   = 58
S_LO   = 60
S_RNG  = 61
S_XCC  = 3
S_F1   = 96
S_KV1  = 97
S_MOFF = 35
S_H64  = 34
S_PTR  = 64
P_AX, P_WQKV, P_AWO, P_BX, P_MEM0, P_WQ, P_WK, P_WV, P_WO, P_SEG, P_OUT, P_DBG, P_WSP = [S_PTR + 2*i for i in range(13)]

MEM, WA, SB, AQ, AK, AV = 0, 32, 64, 80, 88, 96
SB2 = WA
VX, KX = WA + 16, WA + 24
PMA, T0, T1, KVM, POIS = 104, 106, 107, 108, 112
APW, T2 = 113, 114
S_TAG = 46
IDX, L16, ASB, AQW, AQR, AKR, APS, AMS, AKX, LX8, AOW, VZ = range(116, 128)
FLG = AMS
NX = 128
VW0 = 144
L_MEM, L_QK, L_O, L_P, L_SEL, L_ONES, L_ROLE, L_W = 0x0000, 0x2000, 0x3000, 0x3800, 0x3C00, 0x3D00, 0x3D40, 0x4000
L_ZERO = L_P + 128
WSZ = 9 * 4096

STREAM = [('Q',0), ('K',0), ('V',0), ('Q',4), ('Q',7), ('K',4), ('K',7)]
SBUF = {('Q',0): SB, ('K',0): MEM+16, ('V',0): SB2, ('Q',4): SB, ('Q',7): SB2, ('K',4): SB, ('K',7): SB2}

def homes():
    order = [(m, s) for m in 'QKV' for s in range(8) if (m, s) not in STREAM] + [('W', 0, 0), ('W', 1, 0), ('W', 0, 1)]
    home = {}; pos = 0
    for u in order:
        home[u] = ('a', pos) if pos < 256 else ('v', VW0 + pos - 256)
        pos += 32 if u[0] == 'W' else 16
    assert pos == 256 + 256 - VW0
    return home
HOME = homes()

def smf(acc, a, b):
    return f'v_smfmac_f32_16x16x64_bf16 {vr(acc,4)}, {vr(a,4)}, {vr(b[1],8,b[0])}, v{IDX}'
def mf32(d, a, b, c):
    return f'v_mfma_f32_16x16x32_bf16 {vr(d,4)}, {vr(a,4)}, {vr(b,4)}, ' + ('0' if c is None else vr(c,4))
def mf16(d, a, b, c):
    return f'v_mfma_f32_16x16x16_bf16 {vr(d,4)}, {vr(a,2)}, {vr(b,2)}, ' + ('0' if c is None else vr(c,4))
def dsr(d, addr, off, tag=None): return f'ds_read_b128 {vr(d,4)}, v{addr} offset:{off}' + (f' ;#{tag}' if tag else '')

def srd(A, s, ptr, size):
    A(f's_mov_b32 s{s}, s{ptr}\ns_and_b32 s{s+1}, s{ptr+1}, 0xffff\ns_mov_b32 s{s+2}, {size:#x}\ns_mov_b32 s{s+3}, 0x20000')

def chunk(w, s): return (2*w + s) % 8
def drow(c): return 128*(c >> 1) + 32*(c & 1)

def resolve(L, cyclic=False):
    isl = lambda x: x.strip().startswith('ds_')
    isv = lambda x: x.strip().startswith(('buffer_', 'global_'))
    out = []
    for i, x in enumerate(L):
        t = x.strip()
        if not t.startswith('@w'):
            out.append(x); continue
        parts = []
        for a in t.split()[1:]:
            kind, tag = a.split(':')
            f = isl if kind == 'l' else isv
            n = 0; k = i - 1; found = False
            while k >= (i - len(L) if cyclic else 0):
                y = L[k]
                if f(y):
                    if y.strip().endswith('#' + tag): found = True; break
                    n += 1
                k -= 1
            assert found, a
            parts.append(f'lgkmcnt({min(n,15)})' if kind == 'l' else f'vmcnt({n})')
        out.append('    s_waitcnt ' + ' '.join(sorted(parts, reverse=True)))
    return out

def load_weights(A0, w, arrive):
    A = Asm()
    VQ, VW, ATW, ATL, ATR, TMP = 64, 65, 66, 68, 72, 0
    base = L_W + WSZ*w
    A(f"""
    v_lshrrev_b32 v80, 4, v{L16}               ; lane
    v_lshrrev_b32 v81, 4, v80
    v_and_b32 v82, 1, v81
    v_lshlrev_b32 v{VQ}, 6, v82
    v_lshrrev_b32 v82, 1, v81
    v_lshl_add_u32 v{VQ}, v82, 4, v{VQ}        ; 64*(r&1) + 16*(r>>1)
    v_lshlrev_b32 v{VQ}, 13, v{VQ}
    v_add_u32 v82, {4*(w & 1)}, v81
    v_lshlrev_b32 v82, 1, v82
    v_and_b32 v83, 15, v80
    v_xor_b32 v82, v82, v83
    v_lshl_add_u32 v{VQ}, v82, 4, v{VQ}
    v_lshrrev_b32 v82, 5, v80
    v_lshlrev_b32 v{VW}, 4, v82                ; 16*(l>>5)
    v_bfe_u32 v82, v80, 4, 1
    v_lshl_add_u32 v{VW}, v82, 5, v{VW}        ; +32*(r>>1), r=(l>>3)&3
    v_bfe_u32 v82, v80, 3, 1
    v_add_u32 v{VW}, v82, v{VW}
    v_lshlrev_b32 v{VW}, 10, v{VW}
    v_and_b32 v82, 7, v80
    v_lshl_add_u32 v{VW}, v82, 4, v{VW}
    v_lshrrev_b32 v81, 2, v80                  ; 4g+r
    v_lshlrev_b32 v{ATW}, 7, v81
    v_bfe_u32 v82, v80, 1, 1
    v_lshl_add_u32 v{ATW}, v82, 6, v{ATW}
    v_and_b32 v82, 1, v80
    v_lshl_add_u32 v{ATW}, v82, 3, v{ATW}
    v_add_u32 v{ATW}, {base}, v{ATW}
    v_and_b32 v82, 7, v81
    v_xor_b32 v82, {2*w}, v82
    v_lshlrev_b32 v{ATL}, 8, v81
    v_lshl_add_u32 v{ATL}, v82, 5, v{ATL}
    v_and_b32 v82, 3, v80
    v_lshl_add_u32 v{ATL}, v82, 3, v{ATL}
    v_xor_b32 v{ATL+1}, 32, v{ATL}
    """)
    for Q in range(4):
        for t in range(2): A(f'v_add_u32 v{ATR+2*Q+t}, {L_W + WSZ*Q + 7*4096}, v{ATL+t}')
    wq = [(0,0), (1,0), (0,1), (1,1)]
    def issue_w(k):
        cc, q2 = wq[k]; slot = 2*(k % 3)
        for j in range(8):
            q = j >> 1
            e = 64*cc + 8*(q >> 1) + 2*(q & 1) + 4*(j & 1)
            A(f's_mov_b32 m0, {base + slot*4096 + j*1024}\ns_add_u32 s{S_T}, s{S_HWO}, {e*1024 + w*256 + q2*128}')
            A(f'buffer_load_dwordx4 v{VW}, {sr(S_WO,4)}, s{S_T} offen lds ;#W{k}')
    units = [(m, c) for m in 'QKV' for c in range(8)]
    def issue(k):
        m, c = units[k]; s = {'Q': S_WQ, 'K': S_WK, 'V': S_WV}[m]; ring = k % 3
        for Q in range(4):
            dst = Q*4096 if ring == 0 else L_W + WSZ*Q + (6 + ring)*4096
            d = drow(c) + 8*(Q & 1) + 2*(Q >> 1) + 4*(w >> 1) + (w & 1)
            A(f's_mov_b32 m0, {dst + w*1024}\ns_add_u32 s{S_T}, s{S_HOFF}, {d*8192}')
            A(f'buffer_load_dwordx4 v{VQ}, {sr(s,4)}, s{S_T} offen lds ;#U{k}')
    for k in range(3): issue_w(k)
    for k in range(4):
        A(f'@w v:W{k}')
        kind, b = HOME.get(('W',) + wq[k], ('v', WA))
        for tt in range(4):
            for q in range(4):
                A(f'ds_read_b64_tr_b16 {vr(b + 8*tt + 2*q, 2, kind)}, v{ATW} offset:{2*(k % 3)*4096 + q*2048 + tt*16}')
        if k == 0:
            A('s_waitcnt lgkmcnt(0)'); issue_w(3); issue(0); issue(1)
    for k, (m, c) in enumerate(units):
        A(f's_waitcnt lgkmcnt(0)\n@w v:U{k}')
        if k == 1: arrive(A, 1)
        A('s_barrier')
        if k + 2 < 24: issue(k + 2)
        if k == 0: arrive(A, 0)
        if k == 1: arrive(A, 2)
        u = (m, (c - 2*w) % 8); ring = k % 3
        kind, b = HOME.get(u, ('v', TMP))
        for t in range(2):
            for Q in range(4):
                ad, off = (ATL+t, Q*4096) if ring == 0 else (ATR+2*Q+t, (ring-1)*4096)
                A(f'ds_read_b64_tr_b16 {vr(b + 8*t + 2*Q, 2, kind)}, v{ad} offset:{off}')
        if u not in HOME:
            A('s_waitcnt lgkmcnt(0)')
            for i in range(4): A(f'ds_write_b128 v{ASB}, {vr(TMP + 4*i, 4)} offset:{STREAM.index(u)*4096 + i*1024}')
    A('s_waitcnt lgkmcnt(0)\ns_barrier')
    for i in range(8): A(f'ds_write_b128 v{ASB}, {vr(WA + 4*i, 4)} offset:{7*4096 + i*1024}')
    A0.lines += resolve(A.lines)

def step_offsets(A, w, kvs=524288):
    A(f"""
    s_and_b32 s{S_T}, s{S_STEP}, 1
    s_lshl_b32 s{S_T}, s{S_T}, 18
    s_add_u32 s{S_PST}, s{S_T}, s{S_H64}
    s_add_u32 s{S_PST}, s{S_PST}, {WS_P + 8*w*8192}
    s_add_u32 s{S_PST1}, s{S_PST}, 4096
    s_lshl_b32 s{S_PLD}, s{S_H}, 13
    s_add_u32 s{S_PLD}, s{S_PLD}, s{S_T}
    s_add_u32 s{S_PLD}, s{S_PLD}, {WS_P}
    s_bfe_u32 s{S_TAG}, s{S_STEP}, 0x10001
    """)
    if w == 0: A(f's_add_u32 s{S_PLD1}, s{S_PLD}, 4096')
    A(f"""
    s_add_u32 s{S_T}, s{S_STEP}, 1
    s_and_b32 s{S_T}, s{S_T}, 3
    s_lshl_b32 s{S_T}, s{S_T}, 13
    s_add_u32 s{S_MLD}, s{S_T}, {WS_M + 2048*w}
    """)
    if w == 0: A(f's_add_u32 s{S_MST}, s{S_MLD}, s{S_MOFF}')
    if w == 3:
        A(f"""
        s_add_u32 s{S_T}, s{S_T}, 8192
        s_and_b32 s{S_T}, s{S_T}, {3 << 13}
        s_add_u32 s{S_MPO}, s{S_T}, s{S_MOFF}
        s_add_u32 s{S_MPO}, s{S_MPO}, {WS_M}
        """)
    A(f"""
    s_lshl_b32 s{S_PUB}, s{S_STEP}, 5
    s_add_u32 s{S_PUB}, s{S_PUB}, s{S_H}
    s_lshl_b32 s{S_PUB}, s{S_PUB}, 12
    s_add_u32 s{S_PUB}, s{S_PUB}, {WS_KVM + 1024*w}
    s_cmp_lt_u32 s{S_STEP}, 62
    s_cselect_b32 s{S_T}, {kvs}, 0
    s_add_u32 s{S_KV}, s{S_KV}, s{S_T}
    s_add_u32 s{S_KV1}, s{S_KV1}, s{S_T}
    """)

def lines(fn, *a):
    B = Asm(); fn(B, *a); return [l.strip() for l in B.lines]

def mixed(few, many):
    out = []; k = len(many) // max(1, len(few)); few = list(few)
    for i, x in enumerate(many):
        out.append(x)
        if few and (i + 1) % k == 0: out.append(few.pop(0))
    return out + few

def slot_order(xs):
    rank = lambda x: 0 if x.startswith(('s_', '@')) else (1 if x.startswith(('ds_', 'buffer_', 'global_')) else 2)
    return sorted(xs, key=rank)

def chain_wave(A, w, opt):
    ws = sr(S_WS, 4)
    A(f"""
    v_and_b32 v68, 63, v0
    v_lshlrev_b32 v{L16}, 4, v68
    v_xor_b32 v{LX8}, 128, v{L16}
    v_add_u32 v{ASB}, {L_W + WSZ*w}, v{L16}
    v_lshrrev_b32 v69, 4, v68                  ; g
    v_and_b32 v70, 15, v68                     ; n
    v_bfe_u32 v71, v68, 1, 1
    v_mul_u32_u24 v{IDX}, 0xaaaa, v71
    v_add_u32 v{IDX}, 0x4444, v{IDX}
    v_lshlrev_b32 v{AQW}, 2, v70
    v_xor_b32 v{AQW}, {32*(w & 1)}, v{AQW}
    v_lshl_add_u32 v{AQW}, v69, 7, v{AQW}
    v_add_u32 v{AQW}, {L_QK + w*1024}, v{AQW}
    v_lshrrev_b32 v64, 2, v70
    v_and_b32 v65, 1, v70
    v_lshl_add_u32 v66, v64, 1, v65
    v_lshlrev_b32 v67, 1, v71
    v_xor_b32 v67, v67, v69
    v_lshlrev_b32 v{AKR}, 4, v67
    v_lshl_add_u32 v{AKR}, v66, 6, v{AKR}
    v_lshl_add_u32 v{AKR}, v71, 10, v{AKR}
    v_add_u32 v{AKR}, {L_QK + 512}, v{AKR}
    v_lshrrev_b32 v72, 3, v70
    v_and_b32 v73, 7, v70
    v_lshlrev_b32 v67, 1, v72
    v_xor_b32 v67, v67, v69
    v_lshlrev_b32 v{AQR}, 4, v67
    v_lshl_add_u32 v{AQR}, v73, 6, v{AQR}
    v_lshl_add_u32 v{AQR}, v72, 10, v{AQR}
    v_add_u32 v{AQR}, {L_QK}, v{AQR}
    v_lshrrev_b32 v67, 1, v73
    v_lshlrev_b32 v{AOW}, 6, v67
    v_lshl_add_u32 v{AOW}, v65, 4, v{AOW}
    v_lshl_add_u32 v{AOW}, v72, 3, v{AOW}
    v_lshl_add_u32 v{AOW}, v69, 8, v{AOW}
    v_lshrrev_b32 v67, 3, v68
    v_lshlrev_b32 v{APS}, 13, v67
    v_lshl_add_u32 v{APS}, v73, 3, v{APS}
    v_lshlrev_b32 v{AMS}, 8, v69
    v_lshl_add_u32 v{AMS}, v70, 2, v{AMS}
    v_lshlrev_b32 v{AKX}, 8, v69
    v_lshl_add_u32 v{AKX}, v66, 4, v{AKX}      ; g*256 + m*16
    v_lshl_add_u32 v{AKX}, v71, 10, v{AKX}
    v_lshlrev_b32 v{T0}, 10, v66
    v_lshl_add_u32 v{T0}, v71, 5, v{T0}
    v_and_b32 v67, 1, v69
    v_lshl_add_u32 v{T0}, v67, 3, v{T0}
    v_lshrrev_b32 v67, 1, v69
    v_lshl_add_u32 v{T0}, v67, 2, v{T0}
    """)
    for r in (PMA, PMA+1, VZ, KVM, KVM+1, KVM+2, KVM+3): A(f'v_mov_b32 v{r}, 0')
    for i in range(4): A(f'v_mov_b32 v{POIS+i}, -1')
    A(f"""
    s_mov_b32 s{S_EXO}, 0x00ff00ff
    s_mov_b32 s{S_EXO+1}, s{S_EXO}
    s_mov_b32 s{S_C}, 0x3e0293ee               ; 128^-0.5 * log2(e)
    s_mov_b32 s{S_LO}, 0x30800000              ; 2^-30
    s_mov_b32 s{S_RNG}, {opt.get('rng', 0x1e000000):#x}             ; 60 binades
    s_mov_b32 s{S_BUD}, 400000
    s_mov_b32 s{S_R1}, 0
    s_mov_b32 s{S_R2}, 0
    s_lshl_b32 s{S_HOFF}, s{S_H}, 8
    s_lshl_b32 s{S_HWO}, s{S_H}, 17
    s_lshr_b32 s{S_EXM}, s{S_H}, 3
    s_lshl_b32 s{S_EXM}, s{S_EXM}, 11
    s_and_b32 s{S_T}, s{S_H}, 1
    s_lshl_b32 s{S_T}, s{S_T}, 10
    s_add_u32 s{S_EXM}, s{S_EXM}, s{S_T}
    s_and_b32 s{S_T}, s{S_H}, 6
    s_lshl_b32 s{S_T}, s{S_T}, 5
    s_add_u32 s{S_EXM}, s{S_EXM}, s{S_T}
    """)
    A(f's_lshl_b32 s{S_T}, s{S_H}, 13\ns_add_u32 s{S_T}, s{S_T}, {WS_P + ((w >> 1) << 18) + (w & 1)*4096}')
    for i in range(4):
        A(f'buffer_store_dwordx4 {vr(POIS,4)}, v{L16}, {ws}, s{S_T} offen offset:{i*1024} sc1')
    A(f's_add_u32 s{S_T}, s{S_EXM}, {WS_M + (w << 13)}')
    A(f'buffer_store_dword v{POIS}, v{AMS}, {ws}, s{S_T} offen sc1')
    for s, p in ((S_WQ, P_WQ), (S_WK, P_WK), (S_WV, P_WV), (S_WO, P_WO)):
        srd(A, s, p, 0x400000)
    def arrive(B, stage):
        if stage == 0 and w == 0: claim_issue(B, sr(P_DBG,2))
        if stage == 1 and w == 0: claim_post(B, 84, VZ, L_W + 6*4096)
        if stage == 2: claim_check(B, 84, VZ, L_W + 6*4096)
    if opt.get('stamp'): A('s_memrealtime s[90:91]\ns_waitcnt lgkmcnt(0)\ns_mov_b32 s101, s90')
    load_weights(A, w, arrive)
    if opt.get('stamp'): A('s_memrealtime s[90:91]\ns_waitcnt lgkmcnt(0)\ns_mov_b32 s63, s90')
    A(f's_mov_b32 s{S_MOFF}, s{S_EXM}\ns_lshl_b32 s{S_H64}, s{S_H}, 6\ns_mov_b32 s{S_EXM}, 0')
    A(f"""
    v_and_b32 v{APW}, 0xf0, v{L16}
    v_bfe_u32 v64, v{L16}, 9, 1
    v_lshl_add_u32 v{APW}, v64, 8, v{APW}
    v_bfe_u32 v64, v{L16}, 8, 1
    v_lshl_add_u32 v{APW}, v64, 2, v{APW}
    """)
    if w == 0:
        A(f"""
        v_bfe_u32 v64, v{L16}, 4, 4
        v_and_b32 v65, 11, v64
        v_bfe_u32 v66, v64, 2, 1
        v_lshlrev_b32 v66, 4, v66
        v_mov_b32 v67, 0x3f80
        v_lshlrev_b32 v67, v66, v67
        v_and_b32 v66, 0xf0, v{L16}
        """)
        for d in range(4):
            A(f'v_cmp_eq_u32 vcc, {d}, v65\nv_cndmask_b32 v{72+d}, v{VZ}, v67, vcc')
        A(f'ds_write_b128 v66, v[72:75] offset:{L_SEL}')
        A(f'ds_write_b128 v{L16}, v[{KVM}:{KVM+3}] offset:{L_P}')
        for d in range(4): A(f'v_mov_b32 v{76+d}, 0x3f803f80')
        A(f'ds_write_b128 v{VZ}, v[76:79] offset:{L_ONES}')
    nxl = [f'buffer_load_dwordx4 {vr(NX+8,4)}, v{AKX}, {ws}, s{S_KV} offen sc1',
           f'buffer_load_dwordx4 {vr(NX,4)}, v{L16}, {ws}, s{S_KV1} offen sc1',
           f'buffer_load_dwordx4 {vr(NX+12,4)}, v{AKX}, {ws}, s{S_KV} offen offset:2048 sc1',
           f'buffer_load_dwordx4 {vr(NX+4,4)}, v{L16}, {ws}, s{S_KV1} offen offset:1024 sc1 ;#nx']
    A(f"""
    s_lshl_b32 s{S_T}, s{S_H}, 14
    s_add_u32 s{S_KV}, s{S_T}, {WS_KV + (w >> 1)*4096 + (w & 1)*128}
    s_add_u32 s{S_KV1}, s{S_T}, {WS_KV + 8192 + w*2048}
    s_mov_b32 s{S_PUB}, {WS_DUMMY + 1024*w}
    s_mov_b32 s{S_MLD}, {WS_DUMMY}
    s_mov_b32 s{S_STEP}, 0
    """)
    def spin(name, load, cond):
        L = f'C{w}_{name}'
        A(f"""
        {L}:
        {load}
        s_sub_u32 s{S_BUD}, s{S_BUD}, 1
        s_cbranch_scc1 C{w}_bail
        s_waitcnt vmcnt(0)
        {cond}
        s_cbranch_vccnz {L}
        """)
    flags = not opt.get('noflags')
    srd(A, 8, P_MEM0, 8192)
    for s in range(2):
        for b in range(4):
            A(f'buffer_load_dword v{8+4*s+b}, v{T0}, s[8:11], 0 offen offset:{2*(drow(chunk(w,s)) + 64*(b & 1) + 8*(b >> 1))}')
    A(f's_add_u32 s{S_F1}, s{S_HOFF}, {WS_F1}')
    A(f'v_bfe_u32 v85, v{L16}, 4, 3\nv_lshlrev_b32 v85, 2, v85')
    if flags: spin('init', f'global_load_dword v84, v85, {sr(P_DBG,2)} offset:{DBG_BM} sc1', 'v_cmp_ne_u32 vcc, -1, v84')
    else: spin('init', f'global_load_dword v84, v{VZ}, {sr(P_DBG,2)} offset:{DBG_BM} sc1', f'v_cmp_ne_u32 vcc, {(1 << opt.get("solo", 32)) - 1:#x}, v84')
    A(f'global_load_dword v86, v{VZ}, {sr(P_DBG,2)} offset:{DBG_FOREIGN} sc1')
    if flags:
        A(f'v_and_b32 v85, 4, v85')
        spin('f01', f'buffer_load_dword v84, v85, {ws}, s{S_F1} offen sc1', 'v_cmp_ne_u32 vcc, 1, v84')
    A(f's_add_u32 s{S_F1}, s{S_F1}, 8')
    for x in nxl: A(x)
    A(f"""
    s_add_u32 s{S_KV}, s{S_KV}, 524288
    s_add_u32 s{S_KV1}, s{S_KV1}, 524288
    s_mov_b32 s8, 0x05040100
    s_mov_b32 s9, 0x07060302
    s_waitcnt vmcnt(0) lgkmcnt(0)
    v_cmp_ne_u32 {sr(S_T1,2)}, 0, v86
    s_barrier
    """)
    for s in range(2):
        for k in range(4):
            A(f'v_perm_b32 v{MEM+4*s+k}, v{8+4*s+2*(k & 1)+1}, v{8+4*s+2*(k & 1)}, s{8 + (k >> 1)}')
            A(f'v_min_u32 v{MEM+4*s+k}, -2, v{MEM+4*s+k}')
    pre = {u: [dsr(SBUF[u]+4*i, ASB, STREAM.index(u)*4096 + i*1024, u[0]+str(u[1])) for i in range(4)] for u in STREAM}
    cpx = [f'v_mov_b32 v{VX+i}, v{NX+i}' for i in range(16)]
    for x in pre['Q',0] + pre['K',0] + pre['V',0] + cpx: A(x)
    for i in range(24): A(f'v_mov_b32 v{AQ+i}, 0')
    if opt.get('nxe') and not opt.get('novm'):
        if w == 1 and flags: A(f'buffer_load_dword v{FLG}, v{VZ}, {ws}, s{S_F1} offen sc1')
        for x in nxl: A(x)
    if opt.get('stamp'): A(f's_memtime {sr(S_T0,2)}\ns_memrealtime s[98:99]')
    A(f's_cmp_lg_u64 {sr(S_T1,2)}, 0\ns_cbranch_scc1 D{w}_step')
    env = dict(nxl=nxl, pre=pre, cpx=cpx, flags=flags)
    chain_loop(A, w, opt, 'C', opt.get('st', ''), **env)
    chain_loop(A, w, opt, 'D', 'sc1', **env)

def chain_loop(A0, w, opt, pf, st, nxl, pre, cpx, flags):
    A = Asm()
    ws = sr(S_WS, 4)
    nohop = opt.get('nohop')
    Lstep, Lbail, Lslow, Lback, Lfin, Lre2 = [f'{pf}{w}_{n}' for n in ('step','bail','slow','back','fin','re2')]
    def W(m, s, t):
        if (m, s) in STREAM: return ('v', SBUF[m, s] + 8*t)
        k, b = HOME[(m, s)]; return (k, b + 8*t)
    acc = {'Q': AQ, 'K': AK, 'V': AV}
    seq = [('Q',0),('K',0),('V',0),('Q',1),('K',1),('V',1)] + [(m, s) for m in 'QKV' for s in range(2, 8)]
    main = [smf(acc[m]+4*t, MEM+4*s, W(m, s, t)) for (m, s) in seq for t in range(2)]
    QO, KO = MEM, MEM + 8
    SX, SM, P0, P1 = AQ, AQ + 4, AK, AK + 4
    OO, LL, ONE = SB, SB+4, SB+8
    X = opt.get('psx', 37); M = opt.get('psm', 48)
    main[X:X] = [mf32(SX, KX, QO, None), mf32(SX, KX+4, QO+4, SX)]
    main[M:M] = [mf32(SM, KO, QO, None), mf32(SM, KO+4, QO+4, SM)]
    main += [mf32(LL, ONE, P0, None), mf32(OO, VX, P0, None), mf32(OO, VX+4, P1, OO)]
    F = {}
    def add(i, *x): F.setdefault(i, []).extend(x)
    ror8 = 'row_ror:8 row_mask:0xf bank_mask:0xf'
    exo, exa = f's_mov_b64 exec, {sr(S_EXO,2)}', 's_mov_b64 exec, -1'
    fixed = set()
    add(-1, '@w v:m0', 's_waitcnt lgkmcnt(0)', f'v_max3_u32 v{T0}, v{MEM}, v{MEM+1}, v{MEM+2}', f'v_max_u32 v{T0}, v{T0}, v{MEM+3}')
    add(0, f'ds_write_b128 v{L16}, {vr(MEM,4)} offset:{L_MEM + chunk(w,0)*1024}')
    G1 = opt.get('g1', 1)
    add(G1, '@w v:m1', f'v_max3_u32 v{T0}, v{T0}, v{MEM+4}, v{MEM+5}', f'v_max3_u32 v{T0}, v{T0}, v{MEM+6}, v{MEM+7}', f'v_cmp_eq_u32 vcc, -1, v{T0}')
    add(G1+1, f'ds_write_b128 v{L16}, {vr(MEM+4,4)} offset:{L_MEM + chunk(w,1)*1024} ;#mw')
    GB = G1 + 2
    add(GB, 's_nop 0' if nohop else f's_cbranch_vccnz {Lre2}')
    B1 = opt.get('b1', 7)
    g = GB; rd = list(pre['Q',4])
    while g < B1: add(g, rd.pop(0)); g += 1
    add(B1, '@w l:mw', 's_barrier')
    for s in range(2, 8):
        add(B1+s-2, dsr(MEM+4*s, L16, L_MEM + chunk(w,s)*1024, f'c{s}')); add(2*s+7, f'@w l:c{s}')
    g = B1 + 6
    for x in rd + pre['Q',7]: add(g, x); g += 1
    assert g <= 19
    F[15] = [x for x in F[15] if not x.startswith('@')]; add(15, '@w l:c7'); add(16, '@w l:Q4')
    for k in (17, 19, 21): F[k] = [x for x in F[k] if not x.startswith('@')]
    for x in pre['K',4]: add(g, x); g += 1
    add(21, '@w l:Q7')
    for i, x in enumerate(pre['K',7]): add(23+i, x)
    add(27, '@w l:K4'); add(33, '@w l:K7')
    if not opt.get('novm'):
        far = list(nxl)
        if w == 1 and flags: far.insert(0, f'buffer_load_dword v{FLG}, v{VZ}, {ws}, s{S_F1} offen sc1')
        pub = f'buffer_store_dwordx4 {vr(KVM,4)}, v{L16}, {ws}, s{S_PUB} offen sc1'
        if not opt.get('nxe'):
            for i, x in enumerate(far[opt.get('skipfar', 0):]): add(opt.get('nx0', B1 + 1) + opt.get('nxs', 4)*i + w, x)
        if opt.get('log') and w == opt.get('logw', 1):
            for i in range(8): add(12+i, f'v_writelane_b32 v{T1}, s{64+i}, {i}')
            add(20, f'v_lshrrev_b32 v{T0}, 2, v{L16}')
            add(21, f's_add_u32 s72, s{S_H64}, s{S_STEP}'); add(22, 's_lshl_b32 s72, s72, 8'); add(23, f's_add_u32 s72, s72, {WS_STAT + 0x10000}')
            add(30, f'buffer_store_dword v{T1}, v{T0}, {ws}, s72 offen')
        if opt.get('nxe', 0) < 2: add(opt.get('pubg', 29) + w, pub)
    if w == 3: add(30, f'buffer_store_dword v{POIS}, v{AMS}, {ws}, s{S_MPO} offen {st}')
    def epi(a, d0, d1):
        return [f'v_add_f32 v{a}, v{a}, v{a+2}', f'v_add_f32 v{a+1}, v{a+1}, v{a+3}',
                f'v_add_f32 v{a+4}, v{a+4}, v{a+6}', f'v_add_f32 v{a+5}, v{a+5}, v{a+7}',
                f'v_cvt_pk_bf16_f32 v{d0}, v{a}, v{a+4}', f'v_cvt_pk_bf16_f32 v{d1}, v{a+1}, v{a+5}']
    qe = epi(AQ, AQ, AQ+1)
    add(24, qe[0]); add(25, qe[1], qe[2]); add(26, qe[3], qe[4]); add(27, qe[5])
    add(28, f'ds_write2_b32 v{AQW}, v{AQ}, v{AQ+1} offset0:0 offset1:16 ;#qw')
    B2 = X - 5
    add(B2, '@w v:mb l:qw', 's_barrier', dsr(QO, AQR, 0, 'q0'))
    add(B2+1, dsr(QO+4, AQR, 2048, 'q1')); add(B2+2, dsr(ONE, VZ, L_ONES, 'one'))
    add(X-1, '@w l:q0'); add(X, '@w l:q1')
    ke = epi(AK, KVM, KVM+1)
    add(34, 's_nop 0'); add(35, 's_nop 2')
    add(36, ke[0]); add(37, ke[1], ke[2]); add(38, 's_nop 0', ke[3], ke[4]); add(39, 's_nop 1', ke[5])
    fixed.add(39); add(39, f'ds_write2_b32 v{AQW}, v{KVM}, v{KVM+1} offset0:128 offset1:144 ;#kw')
    add(X+3, f'v_add_f32_dpp v{SX}, v{SX+2}, v{SX} {ror8}', f'v_add_f32_dpp v{SX+1}, v{SX+3}, v{SX+1} {ror8}')
    add(X+4, f'v_exp_f32 v{SX+2}, v{SX}')
    add(X+5, f'v_exp_f32 v{SX+3}, v{SX+1}')
    B3 = M - 5
    add(B3, '@w l:kw', 's_barrier', dsr(KO, AKR, 0, 'k0'))
    add(B3+1, dsr(KO+4, AKR, 2048, 'k1'))
    add(X+6, f'v_cvt_pk_bf16_f32 v{SX+2}, v{SX+2}, v{SX+3}')
    F[X+6] = slot_order(F[X+6]); fixed.add(X+6)
    add(X+6, exo, f'ds_write_b32 v{APW}, v{SX+2} offset:{L_P + 512*(w & 1) + 8*(w >> 1)} ;#pw', exa)
    add(M-1, '@w l:k0'); add(M, '@w l:k1')
    B4 = opt.get('b4', 47)
    add(B4, '@w l:pw', 's_barrier', dsr(P0, L16, L_P, 'p0'))
    add(B4+1, dsr(P1, LX8, L_P, 'p1'))
    for k in range(8): add(B3+2+k//4 if False else (45 + k//4), f'v_mov_b32 v{KX+k}, 0') if False else None
    add(M+1, 's_nop 1'); add(M+2, 's_nop 1')
    add(M+3, f'v_add_f32_dpp v{SM}, v{SM+2}, v{SM} {ror8}', f'v_add_f32_dpp v{SM+1}, v{SM+3}, v{SM+1} {ror8}')
    ve = [f'v_add_f32 v{AV}, v{AV}, v{AV+2}', f'v_add_f32 v{AV+1}, v{AV+1}, v{AV+3}',
          f'v_add_f32 v{AV+4}, v{AV+4}, v{AV+6}', f'v_add_f32 v{AV+5}, v{AV+5}, v{AV+7}',
          f'v_cvt_pk_bf16_f32 v{KVM+2}, v{AV}, v{AV+1}', f'v_cvt_pk_bf16_f32 v{KVM+3}, v{AV+4}, v{AV+5}']
    assert M == 48
    add(51, f's_cmp_eq_u32 s{S_STEP}, 63', '@w l:p0')
    add(52, f's_cbranch_scc1 {Lfin}', f'v_mul_f32 v{SM}, s{S_C}, v{SM}', f'v_mul_f32 v{SM+1}, s{S_C}, v{SM+1}')
    add(53, '@w l:p1', f'v_exp_f32 v{SM+2}, v{SM}', ve[0])
    add(54, f'v_exp_f32 v{SM+3}, v{SM+1}', ve[1], ve[2])
    so = lines(step_offsets, w, opt.get('kvstride', 524288))
    so, so_late = so[:-8], so[-8:]
    g = B1
    while so:
        g += 1
        cur = F.get(g, [])
        ns = sum(x.startswith(('s_', '@')) for x in cur); nm = sum(x.startswith(('ds_', 'buffer_')) for x in cur); nv = len(cur) - ns - nm
        free = min(3 - ns - nm - nv, 2 - ns - nm if nv else 3)
        if any('barrier' in x for x in cur): free = 0
        for _ in range(max(0, free)):
            if so: add(g, so.pop(0))
    assert g < 34, g
    for g in (22, 23, 24):
        if sum(x.startswith(('s_', '@')) for x in F.get(g, [])) == 0: add(g, 's_nop 1' if g == 22 else 's_nop 0')
    for k in list(F):
        if k not in fixed: F[k] = slot_order(F[k])
    lg = opt.get('log'); lw = opt.get('logw', 1)
    LOG = ['b1', 'st', 'li', 'p0', 'p7', 'b5', 'm0']
    def stp(name):
        if lg: A(f's_memtime s[{20+2*LOG.index(name)}:{21+2*LOG.index(name)}]')
    if lg: F[B1].append('s_memtime s[20:21]'); F[-1].insert(1, 's_memtime s[90:91]')
    A(f'{Lstep}:')
    A.weave(main, F)
    def pv_tail(B, fast):
        B(f'{exo}\nv_cvt_pk_bf16_f32 v{PMA}, v{SM+2}, v{SM+3}\n{exa}')
        if fast: B(ve[3])
        B(mf16(LL, ONE, PMA, LL))
        B(f'v_mov_b32_dpp v{PMA+1}, v{PMA} {ror8}')
        if fast: B(ve[4] + '\n' + ve[5])
        B('s_nop 1')
        B(mf16(OO, KVM+2, PMA, OO))
        B(f"""
        s_nop 1
        v_rcp_f32 v{T0}, v{LL}
        v_subrev_u32 v{T1}, s{S_LO}, v{LL}
        v_cmp_lt_u32 vcc, s{S_RNG}, v{T1}
        v_mov_b32_dpp v{T0}, v{T0} row_ror:8 row_mask:0xf bank_mask:0xc
        """)
        for i in range(4): B(f'v_mul_f32 v{OO+i}, v{T0}, v{OO+i}')
        B(f'v_cvt_pk_bf16_f32 v{AV}, v{OO}, v{OO+1}\nv_cvt_pk_bf16_f32 v{AV+1}, v{OO+2}, v{OO+3}')
        B(f'ds_write_b64 v{AOW}, {vr(AV,2)} offset:{L_O + (w >> 1)*1024 + (w & 1)*32}')
    pv_tail(A, True)
    zmf = lambda r: f'v_mfma_f32_16x16x1_4b_f32 {vr(r,16)}, v{VZ}, v{VZ}, 0'
    awake = f'v_mov_b32 v{T1}, 0'
    A(zmf(WA)); A(f's_and_b64 vcc, vcc, {sr(S_EXO,2)}')
    A('s_nop 0' if nohop else f's_cbranch_scc1 {Lslow}')
    A(f'{Lback}:')
    for i in range(opt.get('z1', 3)): A(awake)
    A('s_waitcnt lgkmcnt(0)\ns_barrier')
    A(dsr(AQ, L16, L_O, 'o0')); A(dsr(AQ+4, L16, L_O + 1024, 'o1')); A(zmf(WA+16))
    for i in range(opt.get('z2', 1)): A(awake)
    zw = []
    def WO(cc, T):
        q, tt = T >> 2, T & 3
        if (cc, q) == (1, 1): return ('v', MEM + 8*tt)
        k, b = HOME[('W', cc, q)]; return (k, b + 8*tt)
    main = [smf(WA+4*T, AQ+4*cc, WO(cc, T)) for T in range(8) for cc in range(2)]
    def ep(T):
        a = WA + 4*T
        return [f'v_add_f32 v{a}, v{a}, v{a+2}', f'v_add_f32 v{a+1}, v{a+1}, v{a+3}', f'v_cvt_pk_bf16_f32 v{AK+T}, v{a}, v{a+1}'] + \
               ([f'v_and_or_b32 v{AK+T}, v{AK+T}, -2, s{S_TAG}'] if T % 2 == 1 else [])
    pst = [f'buffer_store_dwordx2 {vr(AK+2*P,2)}, v{APS}, {ws}, s{S_PST + (P >> 1)} offen offset:{(P & 1)*2048} {st}' for P in range(4)]
    F = {}
    add(-1, '@w l:o0'); add(0, '@w l:o1')
    for i in range(8): add(i, dsr(MEM+4*i, ASB, 7*4096 + i*1024, f'w{i}'))
    for i, x in enumerate(zw): add(i % 3, x)
    SEL, DA, DB = AV, AQ, AQ + 4
    for i, x in enumerate(pre['Q',0]): add((8, 9, 10, 12)[i], x)
    add(8, '@w l:w1'); add(10, '@w l:w3'); add(12, '@w l:w7')
    for g in (1, 2, 3, 4, 5, 6, 7, 9, 11, 13, 14): add(g, so_late.pop(0) if so_late else 's_nop 0')
    for T in range(6):
        e = ep(T); add(2*T+3, e[0]); add(2*T+4, *e[1:])
    add(7, pst[0]); add(11, pst[1]); add(15, pst[2], *ep(6))
    for k in list(F): F[k] = slot_order(F[k])
    A.weave(main, F)
    for x in ep(7): A(x)
    A(pst[3])
    if lg and w == lw:
        A('s_waitcnt lgkmcnt(0)')
        for i in range(7): A(f's_mov_b32 s{64+i}, s{20+2*i}')
        A('s_mov_b32 s71, s90')
    stp('st')
    def pad(n):
        while n > 0:
            A(f'{awake}\ns_nop 2'); n -= 4
    zk = [f'v_mov_b32 v{AK+i}, 0' for i in range(8)]
    zqv = [f'v_mov_b32 v{AV+i}, 0' for i in range(8)] + [f'v_mov_b32 v{AQ+i}, 0' for i in range(8)]
    d1, d2, d3, d4 = opt.get('d1', 20), opt.get('d2', 36), opt.get('d3', 28), opt.get('d4', 16)
    wnx = '@w v:nx' if not opt.get('novm') else 's_nop 0'
    if w == 0:
        Lrb, Lra, Lq = f'{pf}{w}_rb', f'{pf}{w}_ra', f'{pf}{w}_q1'
        pl = [f'buffer_load_dwordx4 {vr(MEM+4*p,4)}, v{L16}, {ws}, s{S_PLD + (p >> 2)} offen offset:{(p & 3)*1024} sc1' for p in range(8)]
        work = [f'v_and_b32 v{T0}, 0xf0, v{L16}', f'v_and_b32 v{T1}, 0xf0, v{LX8}', dsr(SEL, T0, L_SEL), zk[0], dsr(SEL+4, T1, L_SEL)] + mixed(pre['V',0], zk[1:])
        for x in work: A(x)
        pad(d1 - len(work))
        for x in pl: A(x)
        stp('li')
        for x in pl[4:] + pl[:4]: A(x)
        A('s_waitcnt lgkmcnt(0)')
        def chk(b, T, first, last):
            mis = lambda d: f'v_bitop3_b32 v{d}, s{S_TAG}, v{b+1}, v{b+3} bitop3:0x7e'
            if first: return [mis(T)]
            return [mis(T2), f'v_bitop3_b32 v{T}, v{T}, v{T2}, 1 bitop3:0xa8' if last else f'v_or_b32 v{T}, v{T}, v{T2}']
        def piece(B, p, D, T, first):
            b = MEM + 4*p
            for x in chk(b, T, first, p & 3 == 3): B(x)
            B(mf32(D, b, SEL + 4*((p >> 1) & 1), None if first else D))
        def fold(D):
            return [f'v_permlane32_swap_b32 v{D}, v{D+1}', f'v_permlane32_swap_b32 v{D+2}, v{D+3}',
                    f'v_add_f32 v{D}, v{D}, v{D+1}', f'v_add_f32 v{D+2}, v{D+2}, v{D+3}',
                    f'v_permlane16_swap_b32 v{D}, v{D+2}', f'v_add_f32 v{D}, v{D}, v{D+2}']
        for p in range(4):
            A(f's_waitcnt vmcnt({15 - p})')
            if p == 0: stp('p0')
            piece(A, p, DA, T1, p == 0)
        A(f'v_cmp_ne_u32 vcc, 0, v{T1}')
        for p in range(4, 8):
            if p == 6: A('s_nop 0' if nohop else f's_cbranch_vccnz {Lra}')
            A(f's_waitcnt vmcnt({15 - p})')
            if p == 7: stp('p7')
            piece(A, p, DB, T0, p == 4)
        A(f'v_cmp_ne_u32 vcc, 0, v{T0}')
        fa, fb = fold(DA), fold(DB)
        for x in fa[:4]: A(x)
        A('s_nop 0' if nohop else f's_cbranch_vccnz {Lrb}')
        A(f'{Lq}:')
        for x in [fa[4]] + fb[:4] + [fa[5]] + fb[4:]: A(x)
        A(f"""
        v_cvt_pk_bf16_f32 v{T0}, v{DA}, v{DB}
        buffer_store_dword v{T0}, v{AMS}, {ws}, s{S_MST} offen {st} ;#ms
        """)
        stp('b5')
        work = zqv + cpx
        for x in work[:d2]: A(x)
        pad(d2 - len(work))
        A('s_barrier')
        work2 = work[d2:] + mixed(['s_waitcnt vmcnt(3)'] + pre['K',0], [awake] * 5)
    else:
        for x in mixed(pre['K',0] + pre['V',0], zqv + zk): A(x)
        A(wnx)
        for x in cpx: A(x)
        if w == 1 and flags:
            Lf = f'{pf}{w}_flg'
            A(f"""
            v_cmp_ne_u32 vcc, 1, v{FLG}
            s_cbranch_vccnz {Lf}
            {Lf}_ok:
            s_cmp_lt_u32 s{S_STEP}, 61
            s_cselect_b32 s{S_T}, 4, 0
            s_add_u32 s{S_F1}, s{S_F1}, s{S_T}
            """)
        A('s_barrier')
        stp('b5')
        work2 = []
    mload = [f'buffer_load_dwordx4 {vr(MEM+4*s,4)}, v{L16}, {ws}, s{S_MLD} offen offset:{s*1024} sc1' for s in range(2)]
    stp('m0')
    A(mload[0] + ' ;#m0'); A(f'{awake}\ns_add_u32 s{S_STEP}, s{S_STEP}, 1'); pad(opt.get('d2b', 0)); A(mload[1] + ' ;#m1')
    for x in work2: A(x)
    pad(d3 - len(work2))
    A(mload[0]); A(mload[1] + ' ;#mb')
    nfar = 0
    if opt.get('nxe') and not opt.get('novm'):
        A('s_barrier')
        ff = far + ([pub] if opt['nxe'] == 2 else []); nfar = len(ff)
        for x in ff: A(awake + '\n' + x)
    pad(d4)
    A(f's_branch {Lstep}')
    A0.lines += resolve(A.lines, cyclic=True)
    A = A0
    assert GB == 3
    A(f'{Lre2}:')
    if nfar:
        A(f"""
        s_add_u32 s{S_R2}, s{S_R2}, 1
        s_cmp_lg_u32 s{S_EXM}, s{S_STEP}
        s_mov_b32 s{S_EXM}, s{S_STEP}
        s_waitcnt vmcnt({nfar})
        {zmf(AQ)}
        s_cbranch_scc1 {Lstep}
        s_add_u32 s{S_R2}, s{S_R2}, 0x10000
        """)
    for x in mload: A(x)
    A(f"""
    {'s_waitcnt vmcnt(0)' if nfar else f's_add_u32 s{S_R2}, s{S_R2}, 1'}
    s_sub_u32 s{S_BUD}, s{S_BUD}, 1
    {'' if nfar else zmf(AQ)}
    s_cbranch_scc0 {Lstep}
    {Lbail}:
    s_endpgm
    """)
    if w == 0:
        A(f'{Lrb}:')
        for p in range(4, 8):
            A(f's_waitcnt vmcnt({11 - p})'); piece(A, p, DB, T0, p == 4)
        A(f"""
        v_cmp_ne_u32 vcc, 0, v{T0}
        s_add_u32 s{S_R1}, s{S_R1}, 1
        s_nop 3
        s_cbranch_vccz {Lq}
        """)
        A(f'{Lra}:')
        for x in pl: A(x)
        A(f"""
        s_add_u32 s{S_R1}, s{S_R1}, 0x10000
        s_sub_u32 s{S_BUD}, s{S_BUD}, 1
        s_cbranch_scc1 {Lbail}
        s_waitcnt vmcnt(8)
        """)
        for p in range(8):
            b = MEM + 4*p
            for x in chk(b, T0, p == 0, p == 7): A(x)
            A(mf32((DA, DB)[p >> 2], b, SEL + 4*((p >> 1) & 1), None if p % 4 == 0 else (DA, DB)[p >> 2]))
        A(f'v_cmp_ne_u32 vcc, 0, v{T0}')
        for x in fa[:4]: A(x)
        A(f's_cbranch_vccnz {Lra}\ns_branch {Lq}')
    if w == 1 and flags:
        A(f"""
        {Lf}:
        buffer_load_dword v{FLG}, v{VZ}, {ws}, s{S_F1} offen sc1
        s_sub_u32 s{S_BUD}, s{S_BUD}, 1
        s_cbranch_scc1 {Lbail}
        s_waitcnt vmcnt(0)
        v_cmp_ne_u32 vcc, 1, v{FLG}
        s_cbranch_vccnz {Lf}
        s_branch {Lf}_ok
        """)
    A(f"""
    {Lslow}:
    v_max3_f32 v{T0}, v{SX}, v{SX+1}, v{SM}
    v_max_f32 v{T0}, v{T0}, v{SM+1}
    v_mov_b32 v{T1}, v{T0}
    v_permlane32_swap_b32 v{T1}, v{T0}
    v_max_f32 v{T0}, v{T0}, v{T1}
    v_mov_b32 v{T1}, v{T0}
    v_permlane16_swap_b32 v{T1}, v{T0}
    v_max_f32 v{T0}, v{T0}, v{T1}
    ds_write_b32 v{L16}, v{T0} offset:{L_MEM + 4*w}
    s_waitcnt lgkmcnt(0)
    s_barrier
    ds_read_b128 {vr(AV,4)}, v{L16} offset:{L_MEM}
    s_waitcnt lgkmcnt(0)
    v_max3_f32 v{T0}, v{AV}, v{AV+1}, v{AV+2}
    v_max_f32 v{T0}, v{T0}, v{AV+3}
    """)
    for r in (SX, SX+1, SM, SM+1): A(f'v_sub_f32 v{r+2}, v{r}, v{T0}\nv_exp_f32 v{r+2}, v{r+2}')
    A(f"""
    v_cvt_pk_bf16_f32 v{SX+2}, v{SX+2}, v{SX+3}
    {exo}
    ds_write_b32 v{APW}, v{SX+2} offset:{L_P + 512*(w & 1) + 8*(w >> 1)}
    {exa}
    s_waitcnt lgkmcnt(0)
    s_barrier
    {dsr(P0, L16, L_P)}
    {dsr(P1, LX8, L_P)}
    s_waitcnt lgkmcnt(0)
    """)
    A(mf32(LL, ONE, P0, None)); A(mf32(OO, VX, P0, None)); A(mf32(OO, VX+4, P1, OO))
    pv_tail(A, False)
    A(f's_branch {Lback}')
    A(f'{Lfin}:')
    for x in ve: A(x)
    A(f's_add_u32 s{S_PUB}, s{S_PUB}, {32*4096}')
    A(f'buffer_store_dwordx4 {vr(KVM,4)}, v{L16}, {ws}, s{S_PUB} offen sc1')
    if opt.get('stamp'):
        A(f"""
        s_memtime {sr(S_T1,2)}
        s_memrealtime s[22:23]
        s_waitcnt lgkmcnt(0)
        s_sub_u32 s{S_T1}, s{S_T1}, s{S_T0}
        s_sub_u32 s{S_T0}, s{S_T0}, s62
        v_mov_b32 v0, s{S_T1}
        v_mov_b32 v1, s{S_R1}
        v_mov_b32 v2, s{S_R2}
        v_mov_b32 v3, s{S_T0}
        s_lshl_b32 s{S_T}, s{S_H}, 6
        s_add_u32 s{S_T}, s{S_T}, {WS_STAT + 16*w}
        s_mov_b64 exec, 1
        buffer_store_dwordx4 v[0:3], v{VZ}, {ws}, s{S_T} offen
        v_mov_b32 v4, s100
        v_mov_b32 v5, s98
        v_mov_b32 v6, s22
        v_mov_b32 v7, s63
        buffer_store_dwordx4 v[4:7], v{VZ}, {ws}, s{S_T} offen offset:2048
        """)
    A('s_endpgm')

def proto(opt):
    opt = dict(noflags=1, **opt)
    A = Asm()
    name = 'k_kernel'
    A(f'; @launch kernel={name} grid=(256,1,1) block=(256,1,1) lds=163840')
    A(f'.amdgcn_target "amdgcn-amd-amdhsa--gfx950"\n.text\n.globl {name}\n.p2align 8\n.type {name},@function\n{name}:')
    A(f'''
    s_memtime s[62:63]
    s_memrealtime s[100:101]
    s_load_dwordx16 s[64:79], s[0:1], 0
    s_load_dwordx8 s[80:87], s[0:1], 64
    s_load_dwordx2 s[88:89], s[0:1], 96
    s_getreg_b32 s3, hwreg(HW_REG_XCC_ID, 0, 3)
    v_lshrrev_b32 v1, 6, v0
    s_lshr_b32 s{S_SLOT}, s2, 3
    v_readfirstlane_b32 s{S_WAVE}, v1
    s_waitcnt lgkmcnt(0)
    s_cmp_lg_u32 s3, 0
    s_cbranch_scc1 L_exit
    s_mov_b32 s{S_H}, s{S_SLOT}
    s_cmp_ge_u32 s{S_H}, {opt.get('solo', 32)}
    s_cbranch_scc1 L_exit
    ''')
    srd(A, S_WS, P_WSP, WS_SIZE)
    for w in range(1, 4):
        A(f's_cmp_eq_u32 s{S_WAVE}, {w}\ns_cbranch_scc1 C{w}_entry')
    for w in range(4):
        A(f'C{w}_entry:')
        chain_wave(A, w, opt)
    A('L_exit:\nL_lost:\ns_endpgm')
    out, n = hazard.fix(A.lines, verbose=opt.get('verbose'))
    return '\n'.join(out) + KERNEL_TAIL.format(name=name)

if __name__ == '__main__':
    import sys
    open(sys.argv[1], 'w').write(proto(dict(stamp=1, verbose=1)))
```

```python
import hazard

class Asm:
    def __init__(self):
        self.lines = []
        self.uid = 0
    def __call__(self, s):
        for ln in s.split('\n'):
            t = ln.strip()
            if not t: continue
            if t.endswith(':') or t.startswith('.') or t.startswith(';'):
                self.lines.append(t)
            else:
                self.lines.append('    ' + t)
    def label(self, base):
        self.uid += 1
        return f'L_{base}_{self.uid}'
    def weave(self, main, fill):
        for x in fill.get(-1, []): self(x)
        for i, m in enumerate(main):
            self(m)
            for x in fill.get(i, []): self(x)
        assert all(k < len(main) for k in fill), (max(fill), len(main))

def vr(b, n=1, k='v'):
    return f'{k}{b}' if n == 1 else f'{k}[{b}:{b+n-1}]'
def sr(b, n=1):
    return vr(b, n, 's')

WS_KV   = 0x0000000
WS_QX   = 0x2000000
WS_KVM  = 0x3000000
WS_P    = 0x3800000
WS_M    = 0x3900000
WS_DUMMY= 0x3910000
WS_FLAG = 0x3A00000
WS_F1   = WS_FLAG
WS_FF   = WS_FLAG + 0x2000
WS_FA   = WS_FLAG + 0x4000
WS_FO   = WS_FLAG + 0x5000
WS_AKV  = 0x3C00000
WS_AO   = 0x4000000
WS_FP   = 0x5000000
DBG_BM, DBG_LOST, DBG_RES, DBG_FOREIGN = 0, 32, 64, 96
S_SLOT, S_LOSTF = 93, 92

S_CLM = 94
def claim_issue(A, dbg):
    A(f'''
    s_lshr_b32 s{S_CLM+1}, s{S_SLOT}, 5
    s_lshl_b32 s{S_CLM+1}, s{S_CLM+1}, 2
    s_lshl_b32 s{S_CLM}, 1, s{S_SLOT}
    s_atomic_or s{S_CLM}, {dbg}, s{S_CLM+1} glc
    ''')
def claim_post(A, vt, vz, lds):
    A(f's_waitcnt lgkmcnt(0)\nv_mov_b32 v{vt}, s{S_CLM}\nds_write_b32 v{vz}, v{vt} offset:{lds}\ns_waitcnt lgkmcnt(0)')
def claim_check(A, vt, vz, lds):
    A(f'''
    ds_read_b32 v{vt}, v{vz} offset:{lds}
    s_waitcnt lgkmcnt(0)
    v_readfirstlane_b32 s19, v{vt}
    s_bitcmp1_b32 s19, s{S_SLOT}
    s_cbranch_scc1 L_lost
    ''')
WS_STAT = 0x3B00000
WS_SIZE = 0x10000000

KERNEL_TAIL = '''
.section .rodata,"a"
.p2align 6
.amdhsa_kernel {name}
  .amdhsa_next_free_vgpr 512
  .amdhsa_next_free_sgpr 102
  .amdhsa_accum_offset 256
  .amdhsa_group_segment_fixed_size 0
  .amdhsa_kernarg_size 104
  .amdhsa_user_sgpr_count 2
  .amdhsa_user_sgpr_kernarg_segment_ptr 1
  .amdhsa_system_sgpr_workgroup_id_x 1
  .amdhsa_float_denorm_mode_32 3
  .amdhsa_float_denorm_mode_16_64 3
.end_amdhsa_kernel
'''
```

```python
import re

TRANS = ('v_exp_f32','v_log_f32','v_rcp_f32','v_rsq_f32','v_sqrt_f32','v_sin_f32','v_cos_f32','v_exp_f16','v_rcp_iflag_f32')

def regs_of(tok):
    tok = tok.strip()
    tok = re.sub(r'^-', '', tok)
    m = re.match(r'^abs\((.*)\)$', tok) or re.match(r'^\|(.*)\|$', tok)
    if m: tok = m.group(1)
    m = re.match(r'^([vas])\[(\d+):(\d+)\]$', tok)
    if m: return {(m.group(1), i) for i in range(int(m.group(2)), int(m.group(3))+1)}
    m = re.match(r'^([vas])(\d+)$', tok)
    if m: return {(m.group(1), int(m.group(2)))}
    if tok in ('vcc','vcc_lo','vcc_hi'): return {('vcc',0)}
    if tok in ('exec','exec_lo','exec_hi'): return {('exec',0)}
    if tok == 'm0': return {('m0',0)}
    return set()

class Ins:
    __slots__ = ('text','mn','ops','kind','wr','rd','states','passes','srcc','ab','target','uncond','dpp','trans','widest','ldsdma','idx')
    def __init__(self, text):
        self.text = text
        t = text.split(';')[0].strip()
        parts = t.split(None, 1)
        mn = parts[0]; rest = parts[1] if len(parts) > 1 else ''
        mn = re.sub(r'_e32$|_e64$', '', mn)
        self.dpp = mn.endswith('_dpp') or 'quad_perm' in rest or 'row_' in rest
        mn = re.sub(r'_dpp$|_sdwa$', '', mn)
        self.mn = mn
        ops = []; cur = ''; depth = 0
        for ch in rest:
            if ch in '[(': depth += 1
            if ch in '])': depth -= 1
            if ch == ',' and depth == 0: ops.append(cur.strip()); cur = ''
            else: cur += ch
        if cur.strip(): ops.append(cur.strip())
        mods = ''
        if ops:
            sp = ops[-1].split(None, 1)
            if len(sp) > 1 and not ops[-1].startswith('hwreg'):
                ops[-1] = sp[0]; mods = sp[1]
        self.ops = ops
        self.states = 1; self.passes = 0; self.srcc = set(); self.ab = set()
        self.wr = set(); self.rd = set(); self.target = None; self.uncond = False
        self.trans = mn in TRANS; self.widest = set(); self.ldsdma = False
        R = [regs_of(o) for o in ops]
        U = lambda l: set().union(*l) if l else set()
        if mn.startswith('v_mfma') or mn.startswith('v_smfmac'):
            self.kind = 'mfma'
            self.passes = 8 if '32x32' in mn else 4
            if mn.endswith('_f32'): self.passes = 16 if '32x32' in mn else 8
            self.wr = R[0]
            if mn.startswith('v_smfmac'):
                self.srcc = R[0]; self.ab = R[1] | R[2] | R[3]
            else:
                self.srcc = R[3]; self.ab = R[1] | R[2]
            self.rd = self.srcc | self.ab
        elif mn.startswith('v_'):
            self.kind = 'valu'
            if mn == 'v_nop': pass
            elif (mn.startswith('v_permlane') and 'swap' in mn) or mn == 'v_swap_b32':
                self.wr = R[0] | R[1]; self.rd = R[0] | R[1]
            elif re.match(r'v_(add|sub|subrev)_co_|v_(addc|subb|subbrev)_co_|v_div_scale|v_mad_u64_u32', mn):
                self.wr = R[0] | R[1]; self.rd = U(R[2:])
            else:
                self.wr = R[0]; self.rd = U(R[1:])
                if mn.startswith('v_fmac') or mn.startswith('v_dot2c') or mn.startswith('v_writelane') or self.dpp: self.rd |= R[0]
                if mn.startswith('v_cmpx'): raise ValueError('avoid v_cmpx')
        elif mn.startswith('ds_'):
            self.kind = 'ds'
            if mn.startswith('ds_read') or mn.startswith('ds_bpermute') or mn.startswith('ds_swizzle') or '_rtn' in mn:
                self.wr = R[0]; self.rd = U(R[1:])
            else: self.rd = U(R)
        elif mn.startswith('buffer_') or mn.startswith('global_'):
            self.kind = 'vmem'
            lds = ('lds' in mods.split()) or mn.startswith('global_load_lds')
            if mn in ('buffer_wbl2','buffer_inv'): pass
            elif lds:
                self.rd = U(R) | {('m0',0)}; self.ldsdma = True
            elif '_load_' in mn:
                self.wr = R[0]; self.rd = U(R[1:])
            elif '_atomic_' in mn:
                self.rd = U(R)
                if 'sc0' in mods.split(): self.wr = R[0]
            else:
                self.rd = U(R)
                if mn.endswith('x4') or mn.endswith('x3'):
                    self.widest = R[0] if mn.startswith('buffer_') else R[1]
        elif mn.startswith('s_'):
            self.kind = 'salu'
            if mn == 's_nop': self.states = int(ops[0], 0) + 1
            elif mn == 's_branch': self.target = ops[0]; self.uncond = True
            elif mn.startswith('s_cbranch'): self.target = ops[0]
            elif mn == 's_endpgm': self.uncond = True
            elif mn in ('s_setpc_b64','s_swappc_b64','s_call_b64'): raise ValueError('indirect jumps unsupported by checker')
            elif mn.startswith('s_cmp') or mn.startswith('s_bitcmp') or mn in ('s_waitcnt','s_barrier','s_sleep','s_setprio','s_sethalt'):
                self.rd = U(R)
            else:
                self.wr = R[0] if R else set(); self.rd = U(R[1:])
        else:
            raise ValueError('unknown instruction: ' + text)

def need(P, C):
    n = 0
    vg = lambda s: {x for x in s if x[0] in 'va' and x[0] != 'vcc'}
    sg = lambda s: {x for x in s if x[0] in ('s','vcc')}
    if P.kind == 'valu':
        w = vg(P.wr)
        if w:
            if C.kind == 'mfma' and w & C.rd: n = max(n, 2)
            if C.kind == 'valu':
                if P.trans and not C.trans and w & C.rd: n = max(n, 1)
                if (C.mn.startswith('v_permlane') or C.dpp) and w & C.rd: n = max(n, 2)
                if C.mn in ('v_readfirstlane_b32','v_readlane_b32') and w & C.rd: n = max(n, 1)
        s = sg(P.wr)
        if s:
            if C.kind in ('valu','mfma') and s & C.rd: n = max(n, 4 if C.mn in ('v_readlane_b32','v_writelane_b32') else 2)
            if C.kind == 'vmem' and s & C.rd: n = max(n, 5)
            if C.kind == 'salu' and s & C.rd and not C.mn.startswith('s_cbranch'): n = max(n, 1)
    elif P.kind == 'mfma':
        big = P.passes + 4
        ovl = P.passes + 2
        if P.mn.endswith('_f32') and C.kind == 'mfma' and not C.mn.endswith('_f32'): ovl = 0
        if C.kind == 'mfma':
            if P.wr & C.ab: n = max(n, big)
            if P.wr & C.srcc and not (P.wr == C.srcc and P.passes == C.passes): n = max(n, ovl)
            if P.wr & C.wr and not (P.wr == C.wr and P.passes == C.passes): n = max(n, ovl)
        elif C.kind in ('valu','ds','vmem'):
            if P.wr & (C.rd | C.wr): n = max(n, big)
            if C.kind == 'valu' and P.srcc & C.wr: n = max(n, P.passes - 1)
    elif P.kind == 'vmem':
        if P.widest & C.wr: n = max(n, 2 if C.kind in ('valu','mfma') else 1)
    elif P.kind == 'salu':
        if ('m0',0) in P.wr and C.ldsdma: n = max(n, 1)
    return n

MAXD = 20
def parse(lines):
    items = []
    for ln in lines:
        t = ln.split(';')[0].strip()
        if not t: items.append(('raw', ln)); continue
        if t.startswith('.') and not t.endswith(':'): items.append(('raw', ln)); continue
        if t.endswith(':'): items.append(('label', t[:-1], ln)); continue
        items.append(('ins', Ins(ln), ln))
    return items

def fix(lines, verbose=False):
    total = 0
    while True:
        items = parse(lines)
        ins = []; labels = {}
        for k, it in enumerate(items):
            if it[0] == 'label': labels[it[1]] = len(ins)
            elif it[0] == 'ins': it[1].idx = k; ins.append(it[1])
        preds = [[] for _ in range(len(ins)+1)]
        for i, I in enumerate(ins):
            if not I.uncond: preds[i+1].append(i)
            if I.target is not None:
                if I.target not in labels: raise ValueError('unknown label ' + I.target)
                preds[labels[I.target]].append(i)
        adds = {}
        for i, C in enumerate(ins):
            if C.kind == 'salu' and not C.rd: continue
            worst = 0; why = None
            stack = [(p, 0) for p in preds[i]]; seen = {}
            while stack:
                p, d = stack.pop()
                if d >= MAXD or seen.get(p, 99) <= d: continue
                seen[p] = d
                P = ins[p]
                n = need(P, C)
                if n - d > worst: worst = n - d; why = P
                dd = d + P.states + adds.get(P.idx, 0)
                for q in preds[p]: stack.append((q, dd))
            if worst > 0:
                adds[C.idx] = worst
                if verbose: print(f'hazard: +{worst} before [{C.text.strip()}] after [{why.text.strip()}]')
        if not adds: return lines, total
        out = []
        for k, it in enumerate(items):
            if k in adds:
                out.append(f'    s_nop {adds[k]-1}'); total += adds[k]
            out.append(it[-1] if it[0] != 'raw' else it[1])
        lines = out
```

```python
from common import *
from chain import S_WS, S_H, S_WAVE, S_T, S_WQ, S_WK, S_WV, S_WO, S_HOFF, S_HWO, S_BUD, S_C, srd, mf32, mf16, dsr
from chain import resolve, slot_order, mixed
from chain import P_AX, P_WQKV, P_AWO, P_BX, P_OUT, P_DBG, P_WQ, P_WK, P_WV, P_WO

S_I    = 18
S_X    = 8
S_Y    = 12
S_SEG  = 38
S_A, S_B, S_D, S_E, S_F = 39, 40, 41, 42, 43
S_M0   = 44
S_CNT  = 45
S_U    = 46
S_G, S_J, S_K, S_L = 47, 54, 55, 56
S_EXA  = 50
S_EXB  = 52
ws = sr(S_WS, 4)

LANE, L16, VZ, VT = 104, 105, 106, 107
NB, NF, NA = 2, 2, 3
NT, NQ = 22, 11
SEG4 = 40
S_IA = 57
XST = 1056
XBUF = 32 * XST
L_AW = 2 * XBUF
AWM = 16384 + 128

def mf3232(d, a, b, c, ka='v', kb='v'):
    return f'v_mfma_f32_32x32x16_bf16 {vr(d,16)}, {vr(a,4,ka)}, {vr(b,4,kb)}, ' + ('0' if c is None else vr(c,16))
def mfk(d, a, b, c):
    return f'v_mfma_f32_16x16x32_bf16 {vr(d,4)}, {vr(a[1],4,a[0])}, {vr(b[1],4,b[0])}, ' + ('0' if c is None else vr(c,4))

def spin(A, name, load, cond_wait, bail, nap=2):
    L = A.label(name)
    A(f"""
    {L}:
    {load}
    s_sub_u32 s{S_BUD}, s{S_BUD}, 1
    s_cbranch_scc1 {bail}
    s_waitcnt vmcnt(0)
    {cond_wait}
    s_cbranch_vccz {L}_ok
    s_sleep {nap}
    s_branch {L}
    {L}_ok:
    """)

def set_flag(A, soff):
    L = A.label('flag')
    A(f"""
    s_cmp_lg_u32 s{S_WAVE}, 0
    s_cbranch_scc1 {L}
    v_mov_b32 v{VT}, 1
    s_mov_b64 exec, 1
    buffer_store_dword v{VT}, v{VZ}, {ws}, s{soff} offen sc1
    s_mov_b64 exec, -1
    {L}:
    """)

def prefetch(A):
    srd(A, S_Y, P_WQKV, 512*3072)
    srd(A, S_X, P_AX, 0x200000)
    A(f"""
    s_sub_u32 s{S_IA}, s{S_I}, {NB+NF}
    v_lshlrev_b32 v2, 4, v0
    s_mul_i32 s{S_A}, s{S_H}, {16*3072}
    """)
    D = vr(8, 4); n = 0
    for p in range(12):
        A(f'buffer_load_dwordx4 {D}, v2, {sr(S_Y,4)}, s{S_A} offen\ns_add_u32 s{S_A}, s{S_A}, 4096'); n += 1
    A(f"""
    s_mul_i32 s{S_A}, s{S_WAVE}, {NA}
    s_add_u32 s{S_A}, s{S_A}, s{S_IA}
    s_lshl_b32 s{S_A}, s{S_A}, 5
    s_add_u32 s{S_A}, s{S_A}, s{S_H}
    s_lshl_b32 s{S_A}, s{S_A}, 10
    """)
    for p in range(6):
        A(f'buffer_load_dwordx4 {D}, v{L16}, {sr(S_X,4)}, s{S_A} offen\ns_add_u32 s{S_A}, s{S_A}, {4*NA*32768}'); n += 1
    assert n == NPRE
NPRE = 18

def load_qkv(A, mats, claim=False):
    VS, AT0, AT1 = 100, 101, 102
    RING = 0x8000
    A(f"""
    v_lshrrev_b32 v1, 4, v{LANE}
    s_and_b32 s{S_T}, s{S_WAVE}, 1
    s_lshl_b32 s{S_T}, s{S_T}, 2
    v_add_u32 v2, s{S_T}, v1
    v_lshlrev_b32 v2, 1, v2
    v_and_b32 v3, 15, v{LANE}
    v_xor_b32 v2, v2, v3
    v_lshlrev_b32 v{VS}, 13, v1
    v_lshl_add_u32 v{VS}, v2, 4, v{VS}
    s_lshl_b32 s{S_T}, s{S_WAVE}, 16
    v_add_u32 v{VS}, s{S_T}, v{VS}
    v_lshrrev_b32 v2, 2, v{LANE}               ; 4g+r
    v_and_b32 v3, 7, v2
    s_lshl_b32 s{S_T}, s{S_WAVE}, 1
    v_xor_b32 v3, s{S_T}, v3
    v_lshlrev_b32 v{AT0}, 8, v2
    v_lshl_add_u32 v{AT0}, v3, 5, v{AT0}
    v_and_b32 v3, 3, v{LANE}
    v_lshl_add_u32 v{AT0}, v3, 3, v{AT0}
    v_add_u32 v{AT0}, {RING}, v{AT0}
    v_xor_b32 v{AT1}, 32, v{AT0}
    v_add_u32 v{AT0+2}, 0x10000, v{AT0}
    v_add_u32 v98, 0x10000, v{AT1}
    s_lshl_b32 s{S_M0}, s{S_WAVE}, 10
    """)
    units = [(m, c) for m in mats for c in range(8)]; NU = len(units)
    def w0(fn):
        L = A.label('w0'); A(f's_cmp_lg_u32 s{S_WAVE}, 0\ns_cbranch_scc1 {L}'); fn(); A(f'{L}:')
    if claim:
        pass
    def issue(k):
        m, c = units[k]; s = {'Q': S_WQ, 'K': S_WK, 'V': S_WV}[m]
        for Q in range(4):
            A(f's_add_u32 m0, s{S_M0}, {RING + (k % 8)*16384 + Q*4096}')
            A(f's_add_u32 s{S_T}, s{S_HOFF}, {(64*c + 32*(Q >> 1) + 4*(Q & 1))*8192}')
            A(f'buffer_load_dwordx4 v{VS}, {sr(s,4)}, s{S_T} offen lds')
    for k in range(7): issue(k)
    if claim: w0(lambda: (A('s_waitcnt vmcnt(28)'), claim_issue(A, sr(P_DBG,2))))
    for k, (m, c) in enumerate(units):
        if claim and k == 0: w0(lambda: claim_post(A, 92, VZ, 0))
        A(f's_waitcnt vmcnt({4*(min(k+7, NU) - k - 1)}) lgkmcnt(0)\ns_barrier')
        if k + 7 < NU: issue(k + 7)
        if claim and k == 0: claim_check(A, 92, VZ, 0)
        slot = k % 8
        for t in range(2):
            for Q in range(4):
                kind, b = WB(m, t, 2*c + (Q >> 1))
                ad = (AT0, AT1)[t] if slot < 4 else (AT0+2, 98)[t]
                A(f'ds_read_b64_tr_b16 {vr(b + 2*(Q & 1), 2, kind)}, v{ad} offset:{(slot % 4)*16384 + Q*4096}')
    A('s_waitcnt lgkmcnt(0)\ns_barrier')

def WB(m, t, ks):
    o = (t*16 + ks) * 4
    return {'K': ('a', o), 'V': ('a', 128 + o), 'Q': ('a', 128 + o)}[m]

def phase_b1(A0, bail):
    A = A0
    ACC, XB, PK, AX, AXN, AWV, POIS, DUM = 0, 32, 64, 108, 109, 110, 112, 116
    acc = lambda m, t, kt: ACC + ('KV'.index(m)*4 + t*2 + kt) * 4
    def xdma(r, tag=''):
        return [f's_add_u32 m0, s{S_M0}, {r*XST}', f's_add_u32 s{S_T}, s{S_A}, {r*1024}',
                f'buffer_load_dwordx4 v{L16}, {sr(S_X,4)}, s{S_T} offen lds{tag}']
    A(f"""
    v_and_b32 v1, 15, v{LANE}
    v_mul_u32_u24 v{AX}, {XST}, v1
    v_lshrrev_b32 v1, 4, v{LANE}
    v_lshl_add_u32 v{AX}, v1, 4, v{AX}
    v_add_u32 v{AXN}, {XBUF}, v{AX}
    s_mov_b32 s{S_SEG}, s{S_I}
    s_mul_i32 s{S_M0}, s{S_WAVE}, {8*XST}
    s_lshl_b32 s{S_A}, s{S_SEG}, 15
    s_lshl_b32 s{S_T}, s{S_WAVE}, 13
    s_add_u32 s{S_A}, s{S_A}, s{S_T}
    s_mov_b32 s{S_CNT}, 0
    s_mov_b32 s{S_L}, {XBUF}
    v_and_b32 v1, 7, v{LANE}
    v_lshlrev_b32 v1, 2, v1
    """)
    for r in (S_B, S_E, S_F): A(f's_mov_b32 s{r}, 0x7ff00000')
    for i in range(4): A(f'v_mov_b32 v{POIS+i}, -1')
    for r in range(8):
        for x in xdma(r): A(x)
    A(f's_mul_i32 s{S_G}, s{S_WAVE}, {NB}\ns_add_u32 s{S_G}, s{S_G}, s{S_I}\ns_lshl_b32 s{S_G}, s{S_G}, 5\ns_add_u32 s{S_G}, s{S_G}, s{S_H}\ns_lshl_b32 s{S_G}, s{S_G}, 10')
    for p in range(8): A(f'buffer_load_dwordx4 {vr(DUM,4)}, v{L16}, {sr(S_X,4)}, s{S_G} offen\ns_add_u32 s{S_G}, s{S_G}, {4*NB*32768}')
    spin(A, 'init', f'global_load_dword v{VT}, v1, {sr(P_DBG,2)} offset:{DBG_BM} sc1', f'v_cmp_ne_u32 vcc, -1, v{VT}', bail, nap=16)
    A('s_barrier')
    ND = 4
    xr = lambda j, ad: dsr(XB + (j % 8)*4, ad, (j >> 4)*16*XST + 64*(j & 15), f'x{j}')
    for j in range(ND): A(xr(j, AX))
    def epilogue(kt):
        o = []
        for t in range(2):
            for hf in range(2): o.append(f'v_cvt_pk_bf16_f32 v{PK+8+4*t+2*kt+hf}, v{acc("V",t,kt)+2*hf}, v{acc("V",t,kt)+2*hf+1}')
            if kt: o.append(f'buffer_store_dwordx4 {vr(PK+8+4*t,4)}, v{L16}, {ws}, s{S_F} offen offset:{t*1024} sc1')
        for t in range(2):
            for r in range(4): o.append(f'v_mul_f32 v{acc("K",t,kt)+r}, s{S_C}, v{acc("K",t,kt)+r}')
        for r in range(4): o.append(f'v_cvt_pk_bf16_f32 v{PK+4+r}, v{acc("K",0,kt)+r}, v{acc("K",1,kt)+r}')
        o.append(f'buffer_store_dwordx4 {vr(PK+4,4)}, v{L16}, {ws}, s{S_E} offen sc1 ;#ks{kt}')
        if kt == 0: o.append(f'buffer_store_dwordx4 {vr(POIS,4)}, v{L16}, {ws}, s{S_B} offen sc1')
        return o
    A = Asm(); A.uid = A0.uid + 100
    Lp = A.label('b1')
    main = []
    for j in range(32):
        kt, ks = j >> 4, j & 15
        X = ('v', XB + (j % 8)*4)
        for t in range(2):
            main.append(mfk(acc('K',t,kt), WB('K',t,ks), X, None if ks == 0 else acc('K',t,kt)))
            main.append(mfk(acc('V',t,kt), X, WB('V',t,ks), None if ks == 0 else acc('V',t,kt)))
    F = {}
    def add(i, *x): F.setdefault(i, []).extend(x)
    for j in range(32):
        add(4*j - 1, f'@w l:x{j}')
        add(4*j + 1, xr(j+ND, AX) if j + ND < 32 else xr(j+ND-32, AXN))
    add(0, 's_barrier')
    add(0, f's_add_u32 s{S_A}, s{S_A}, {NB*32768}'); add(1, f's_add_u32 s{S_M0}, s{S_M0}, s{S_L}'); add(2, f's_sub_u32 s{S_L}, 0, s{S_L}')
    g = 4
    for r in range(8):
        d = xdma(r, ' ;#xd'); add(g, d[0]); add(g+1, d[1]); add(g+2, d[2]); g += 4
    g = 8
    for x in epilogue(1): add(g, x); g += 4 if x.startswith('buffer') else 2
    assert g <= 54, g
    offs = f"""
    s_lshl_b32 s{S_B}, s{S_SEG}, 5
    s_add_u32 s{S_B}, s{S_B}, s{S_H}
    s_lshl_b32 s{S_G}, s{S_WAVE}, 10
    s_lshl_b32 s{S_E}, s{S_B}, 14
    s_add_u32 s{S_E}, s{S_E}, s{S_G}
    s_lshl_b32 s{S_B}, s{S_B}, 12
    s_add_u32 s{S_B}, s{S_B}, s{S_G}
    s_add_u32 s{S_B}, s{S_B}, {WS_KVM}
    s_add_u32 s{S_F}, s{S_E}, s{S_G}
    s_add_u32 s{S_F}, s{S_F}, 8192
    """.split('\n')
    k = 54
    for x in offs:
        if x.strip(): add(k, x.strip()); k += 1
    g = 72
    for x in epilogue(0): add(g, x); g += 4 if x.startswith('buffer') else 1
    add(g, f's_add_u32 s{S_E}, s{S_E}, 4096')
    add(112, '@w v:ks1', 's_barrier')
    add(114, f's_lshl_b32 s{S_G}, s{S_SEG}, 2', f'v_mov_b32 v{VT}, 1'); add(115, f's_add_u32 s{S_G}, s{S_G}, s{S_HOFF}'); add(116, f's_add_u32 s{S_G}, s{S_G}, {WS_F1 - NB*4}')
    add(117, f's_cmp_eq_u32 s{S_CNT}, 0'); add(118, f's_cselect_b32 s{S_G}, 0x7ff00000, s{S_G}')
    add(120, f's_cmp_lg_u32 s{S_WAVE}, 0'); add(121, f's_cselect_b32 s{S_G}, 0x7ff00000, s{S_G}')
    add(122, f'buffer_store_dword v{VT}, v{VZ}, {ws}, s{S_G} offen sc1')
    add(126, f'v_swap_b32 v{AX}, v{AXN}')
    add(124, f's_add_u32 s{S_CNT}, s{S_CNT}, 1'); add(125, f's_add_u32 s{S_SEG}, s{S_SEG}, {NB}'); add(126, f's_cmp_lt_u32 s{S_SEG}, 64')
    for k in list(F): F[k] = slot_order(F[k])
    A(f'{Lp}:')
    A.weave(main, F)
    A(f's_cbranch_scc1 {Lp}')
    A0.lines += resolve(A.lines, cyclic=True); A0.uid = A.uid
    A = A0
    for x in epilogue(1): A(x)
    A(f"""
    s_lshl_b32 s{S_B}, s{S_SEG}, 2
    s_add_u32 s{S_B}, s{S_B}, s{S_HOFF}
    s_add_u32 s{S_B}, s{S_B}, {WS_F1 - NB*4}
    s_waitcnt vmcnt(0) lgkmcnt(0)
    s_barrier
    """)
    set_flag(A, S_B)

def inbox_init(A, POIS, st):
    A(f"""
    s_lshl_b32 s{S_D}, s{S_I}, 21
    s_lshl_b32 s{S_T}, s{S_H}, 15
    s_add_u32 s{S_D}, s{S_D}, s{S_T}
    s_lshl_b32 s{S_T}, s{S_WAVE}, 13
    s_add_u32 s{S_D}, s{S_D}, s{S_T}
    s_add_u32 s{S_D}, s{S_D}, {WS_FP}
    """)
    for z in range(16):
        A(f'buffer_store_dwordx4 {vr(POIS,4)}, v{L16}, {ws}, s{S_D} offen offset:{(z % 4)*1024} {st}')
        if z % 4 == 3: A(f's_add_u32 s{S_D}, s{S_D}, {4096 if z != 7 else (1 << 20) - 4096}')
def set_fo(A, base=WS_FO):
    A(f"""
    s_lshl_b32 s{S_F}, s{S_I}, 7
    s_add_u32 s{S_F}, s{S_F}, {base}
    s_lshl_b32 s{S_T}, s{S_H}, 2
    s_add_u32 s{S_B}, s{S_F}, s{S_T}
    """)
    set_flag(A, S_B)
def wait_fo(A, bail):
    A(f'v_and_b32 v2, 31, v{LANE}\nv_lshlrev_b32 v2, 2, v2')
    spin(A, 'fo', f'buffer_load_dword v{VT}, v2, {ws}, s{S_F} offen sc1', f'v_cmp_ne_u32 vcc, 1, v{VT}', bail)

L_AQ = 0
L_AM = NT*1024
L_AF = L_AM + NQ*1024
L_AO = L_AF + 256
OPT = {}
def phase_a1(A, bail):
    AT, XO, XB, DQ, DV, PK = 0, 1, 8, 40, 56, 72
    A(f"""
    v_lshrrev_b32 v2, 1, v{LANE}
    v_mul_u32_u24 v96, 3072, v2
    v_and_b32 v2, 1, v{LANE}
    v_lshl_add_u32 v96, v2, 4, v96
    s_lshl_b32 s{S_M0}, s{S_WAVE}, 12
    s_mul_i32 s{S_A}, s{S_WAVE}, {128*3072}
    s_lshr_b32 s{S_T}, s{S_HOFF}, 3
    s_add_u32 s{S_A}, s{S_A}, s{S_T}
    """)
    L = A.label('w0'); A(f's_cmp_lg_u32 s{S_WAVE}, 0\ns_cbranch_scc1 {L}\ns_waitcnt vmcnt({NPRE})'); claim_issue(A, sr(P_DBG,2)); A(f'{L}:')
    for m in range(3):
        for j in range(4):
            A(f's_add_u32 m0, s{S_M0}, {L_AW + m*AWM + j*1024}\ns_add_u32 s{S_T}, s{S_A}, {m*1024 + j*32*3072}')
            A(f'buffer_load_dwordx4 v96, {sr(S_Y,4)}, s{S_T} offen lds')
    L = A.label('w0'); A(f's_cmp_lg_u32 s{S_WAVE}, 0\ns_cbranch_scc1 {L}'); claim_post(A, 97, VZ, 0); A(f'{L}:')
    A('s_waitcnt vmcnt(0)\ns_barrier')
    claim_check(A, 97, VZ, 0)
    A(f"""
    v_bfe_u32 v2, v{LANE}, 4, 1                ; G&1
    v_mul_u32_u24 v{AT}, {AWM}, v2
    v_lshrrev_b32 v2, 5, v{LANE}
    v_lshlrev_b32 v3, 8, v2
    v_and_b32 v4, 15, v{LANE}
    v_lshl_add_u32 v3, v4, 3, v3               ; r*32 + c*8
    v_add_u32 v3, {L_AW}, v3
    v_add_u32 v{AT}, v3, v{AT}
    v_add_u32 v3, {2*AWM}, v3
    """)
    for s in range(32):
        for q in range(2):
            A(f'ds_read_b64_tr_b16 {vr(4*s + 2*q, 2, "a")}, v{AT} offset:{s*512 + q*128}')
            A(f'ds_read_b64_tr_b16 {vr(128 + 4*s + 2*q, 2, "a")}, v3 offset:{s*512 + q*128}')
    srd(A, S_X, P_AX, 0x200000)
    AST = 1040; L_AX = L_AM
    A(f"""
    v_and_b32 v4, 31, v{LANE}
    v_mul_u32_u24 v{XO}, {AST}, v4
    v_lshl_add_u32 v{XO}, v2, 4, v{XO}
    s_mul_i32 s{S_M0}, s{S_WAVE}, {32*AST}
    s_add_u32 s{S_M0}, s{S_M0}, {L_AX}
    v_add_u32 v{XO}, s{S_M0}, v{XO}
    s_mov_b32 s{S_EXA}, 0xffff0000
    s_mov_b32 s{S_EXA+1}, 0xffff0000
    s_mov_b32 s{S_E}, 0x3eb8aa3b               ; 16^-0.5 * log2(e)
    s_mov_b32 s{S_CNT}, s{S_WAVE}
    s_waitcnt lgkmcnt(0)
    s_barrier
    """)
    Lp, Ld = A.label('a1'), A.label('a1d')
    A(f"""
    {Lp}:
    s_mul_i32 s{S_SEG}, s{S_CNT}, {NA}
    s_add_u32 s{S_SEG}, s{S_SEG}, s{S_IA}
    s_cmp_ge_u32 s{S_SEG}, 64
    s_cbranch_scc1 {Ld}
    s_lshl_b32 s{S_A}, s{S_SEG}, 15
    """)
    for r in range(32):
        A(f's_add_u32 m0, s{S_M0}, {r*AST}\ns_add_u32 s{S_T}, s{S_A}, {r*1024}\nbuffer_load_dwordx4 v{L16}, {sr(S_X,4)}, s{S_T} offen lds')
    A('s_waitcnt vmcnt(0)')
    xl = lambda s: dsr(XB + (s % 4)*4, XO, 32*s)
    for s in range(3): A(xl(s))
    for s in range(32):
        A(f's_waitcnt lgkmcnt({min(2, 31-s)})')
        A(mf3232(DQ, 4*s, XB + (s % 4)*4, None if s == 0 else DQ, ka='a'))
        if s + 3 < 32: A(xl(s+3))
        A(mf3232(DV, XB + (s % 4)*4, 128 + 4*s, None if s == 0 else DV, kb='a'))
    A(f"""
    s_lshl_b32 s{S_B}, s{S_H}, 6
    s_add_u32 s{S_B}, s{S_B}, s{S_SEG}
    s_lshl_b32 s{S_B}, s{S_B}, 11
    s_add_u32 s{S_B}, s{S_B}, {WS_AKV}
    s_lshl_b32 s{S_T}, s{S_CNT}, 10
    v_add_u32 v2, s{S_T}, v{L16}
    """)
    for r in range(8): A(f'v_mul_f32 v{DQ+r}, s{S_E}, v{DQ+r}')
    for r in range(8): A(f'v_cvt_pk_bf16_f32 v{PK+r}, v{DQ+2*r}, v{DQ+2*r+1}')
    A(f'ds_write_b128 v2, {vr(PK,4)} offset:{L_AQ}')
    A(f'buffer_store_dwordx4 {vr(PK+4,4)}, v{L16}, {ws}, s{S_B} offen sc1')
    for r in range(4): A(f'v_cvt_pk_bf16_f32 v{PK+8+r}, v{DV+2*r}, v{DV+2*r+1}')
    A(f's_mov_b64 exec, {sr(S_EXA,2)}')
    for r in range(4): A(f'v_cvt_pk_bf16_f32 v{PK+8+r}, v{DV+8+2*r}, v{DV+8+2*r+1}')
    A('s_mov_b64 exec, -1')
    A(f'buffer_store_dwordx4 {vr(PK+8,4)}, v{L16}, {ws}, s{S_B} offen offset:1024 sc1')
    A(f"""
    s_add_u32 s{S_CNT}, s{S_CNT}, 4
    s_branch {Lp}
    {Ld}:
    s_waitcnt vmcnt(0) lgkmcnt(0)
    s_barrier
    s_lshl_b32 s{S_B}, s{S_H}, 5
    s_lshl_b32 s{S_T}, s{S_IA}, 2
    s_add_u32 s{S_D}, s{S_B}, {WS_FA}
    s_add_u32 s{S_B}, s{S_D}, s{S_T}
    v_and_b32 v2, 7, v{LANE}
    v_lshlrev_b32 v2, 2, v2
    """)
    spin(A, 'init', f'global_load_dword v{VT}, v2, {sr(P_DBG,2)} offset:{DBG_BM} sc1', f'v_cmp_ne_u32 vcc, -1, v{VT}', bail, nap=16)
    set_flag(A, S_B)
    A(f'v_min_u32 v2, {NA-1}, v{LANE}\nv_lshlrev_b32 v2, 2, v2')
    spin(A, 'fa', f'buffer_load_dword v{VT}, v2, {ws}, s{S_D} offen sc1', f'v_cmp_ne_u32 vcc, 1, v{VT}', bail)

def phase_a2(A, bail):
    KC, VC, KN, VN, S0, S1, E, PB, AD, Q, MX = 0, 4, 12, 16, 24, 40, 56, 72, 97, 128, 176
    S_BAT, S_ATT, S_KT = S_SEG, S_J, S_E
    A(f"""
    v_and_b32 v3, 27, v{LANE}
    v_mov_b32 v2, 0x3f803f80
    v_cmp_eq_u32 vcc, 16, v3
    v_cndmask_b32 v2, v{VZ}, v2, vcc
    s_not_b64 {sr(S_EXB,2)}, {sr(S_EXA,2)}
    s_mov_b32 s{S_K}, 0x30800000               ; 2^-30
    s_mov_b32 s{S_L}, {OPT.get('rng', 0x1e000000):#x}               ; 60 binades
    s_mov_b32 s{S_BAT}, 0
    """)
    for r in range(8): A(f'v_mov_b32 v{VN+r}, v2')
    def kvload():
        A(f'buffer_load_dwordx4 {vr(KN,4)}, v{L16}, {ws}, s{S_B} offen sc1\ns_mov_b64 exec, {sr(S_EXB,2)}')
        for o in range(2): A(f'buffer_load_dwordx4 {vr(VN+4*o,4)}, v{L16}, {ws}, s{S_B} offen offset:{1024 + 256*o} sc1')
        A(f's_mov_b64 exec, -1\ns_add_u32 s{S_B}, s{S_B}, 2048')
    def sweep(name, body):
        L = A.label(name)
        A(f"""
        s_lshl_b32 s{S_B}, s{S_H}, 17
        s_lshl_b32 s{S_T}, s{S_WAVE}, 15
        s_add_u32 s{S_B}, s{S_B}, s{S_T}
        s_add_u32 s{S_B}, s{S_B}, {WS_AKV}
        s_mov_b32 s{S_KT}, 0
        """)
        kvload()
        A(f'{L}:\ns_waitcnt vmcnt(0)')
        for r in range(12): A(f'v_mov_b32 v{KC+r}, v{KN+r}')
        kvload()
        body()
        A(f's_add_u32 s{S_KT}, s{S_KT}, 1\ns_cmp_lt_u32 s{S_KT}, 16\ns_cbranch_scc1 {L}\ns_waitcnt vmcnt(0)')
    def pv(j, half): return f'v_mfma_f32_32x32x16_bf16 {vr(16*j,16,"a")}, {vr(VC+4*half,4)}, {vr(PB+4*half,4)}, {vr(16*j,16,"a")}'
    def accumulate(shift):
        Sb = (S0, S1)
        A(mf3232(S0, KC, Q, None))
        for j in range(NQ):
            s = Sb[j % 2]
            ex = (lambda r: f'v_sub_f32 v{E+r}, v{s+r}, v{MX+j}\nv_exp_f32 v{E+r}, v{E+r}') if shift else (lambda r: f'v_exp_f32 v{E+r}, v{s+r}')
            if j + 1 < NQ: A(mf3232(Sb[(j+1) % 2], KC, Q+4*(j+1), None))
            for r in range(8): A(ex(r))
            if j > 0: A(pv(j-1, 1))
            for r in range(4): A(f'v_cvt_pk_bf16_f32 v{PB+r}, v{E+2*r}, v{E+2*r+1}')
            for r in range(8, 12): A(ex(r))
            A(pv(j, 0))
            for r in range(12, 16): A(ex(r))
            for r in range(4, 8): A(f'v_cvt_pk_bf16_f32 v{PB+r}, v{E+2*r}, v{E+2*r+1}')
        A(pv(NQ-1, 1))
    def maxima():
        Sb = (S0, S1, E)
        for j in range(NQ + 2):
            if j < NQ: A(mf3232(Sb[j % 3], KC, Q+4*j, None))
            if j >= 2:
                for r in range(0, 16, 2): A(f'v_max3_f32 v{MX+j-2}, v{MX+j-2}, v{Sb[(j-2) % 3]+r}, v{Sb[(j-2) % 3]+r+1}')
    def zero_o():
        for z in range(0, 16*NQ, 16): A(f'v_mfma_f32_16x16x1_4b_f32 {vr(z,16,"a")}, v{VZ}, v{VZ}, 0')
    Lb, Lre, Lfin = A.label('a2b'), A.label('a2r'), A.label('a2f')
    A(f"""
    {Lb}:
    s_mul_i32 s{S_T}, s{S_BAT}, {NQ*1024}
    v_add_u32 v{AD}, s{S_T}, v{L16}
    s_mov_b32 s{S_ATT}, 0
    ds_write_b32 v{VZ}, v{VZ} offset:{L_AF}
    """)
    for j in range(NQ): A(dsr(Q+4*j, AD, L_AQ + j*1024))
    zero_o()
    A('s_waitcnt lgkmcnt(0)')
    sweep('a2p', lambda: accumulate(False))
    A(f's_branch {Lfin}\n{Lre}:\ns_mov_b32 s{S_ATT}, 1')
    for j in range(NQ): A(f'v_mov_b32 v{MX+j}, 0xff800000')
    sweep('a2m', maxima)
    A(f's_mul_i32 s{S_T}, s{S_WAVE}, {NQ*256}\nv_lshlrev_b32 v{AD+1}, 2, v{LANE}\nv_add_u32 v{AD+2}, s{S_T}, v{AD+1}')
    for j in range(NQ):
        A(f'v_mov_b32 v{E}, v{MX+j}\nv_permlane32_swap_b32 v{E}, v{MX+j}\nv_max_f32 v{MX+j}, v{MX+j}, v{E}\nds_write_b32 v{AD+2}, v{MX+j} offset:{L_AM + j*256}')
    zero_o()
    A('s_waitcnt lgkmcnt(0)\ns_barrier')
    for j in range(NQ):
        for w in range(4): A(f'ds_read_b32 v{E+w}, v{AD+1} offset:{L_AM + w*NQ*256 + j*256}')
        A(f's_waitcnt lgkmcnt(0)\nv_max3_f32 v{MX+j}, v{E}, v{E+1}, v{E+2}\nv_max_f32 v{MX+j}, v{MX+j}, v{E+3}')
    sweep('a2q', lambda: accumulate(True))
    A(f"""
    {Lfin}:
    s_mul_i32 s{S_T}, s{S_WAVE}, {NQ*9*256}
    s_add_u32 s{S_T}, s{S_T}, {L_AO}
    v_lshlrev_b32 v{AD+1}, 2, v{LANE}
    v_add_u32 v{AD+2}, s{S_T}, v{AD+1}
    """)
    for j in range(NQ):
        for r in range(9): A(f'ds_write_b32 v{AD+2}, a{16*j+r} offset:{(j*9 + r)*256}')
    A(f's_waitcnt lgkmcnt(0)\ns_barrier\ns_mov_b32 s{S_CNT}, s{S_WAVE}')
    Lp, Ld, Lk = A.label('a2c'), A.label('a2d'), A.label('a2k')
    C = 24
    A(f"""
    {Lp}:
    s_mul_i32 s{S_B}, s{S_BAT}, {NQ}
    s_add_u32 s{S_B}, s{S_B}, s{S_CNT}
    s_mul_i32 s{S_B}, s{S_B}, {NA}
    s_add_u32 s{S_B}, s{S_B}, s{S_IA}
    s_cmp_ge_u32 s{S_B}, 64
    s_cbranch_scc1 {Ld}
    s_mul_i32 s{S_T}, s{S_CNT}, {9*256}
    s_add_u32 s{S_T}, s{S_T}, {L_AO}
    v_add_u32 v{AD}, s{S_T}, v{AD+1}
    v_add_u32 v{AD+2}, {2*NQ*9*256}, v{AD}
    s_lshl_b32 s{S_B}, s{S_B}, 5
    s_add_u32 s{S_B}, s{S_B}, s{S_H}
    s_lshl_b32 s{S_B}, s{S_B}, 10
    s_add_u32 s{S_B}, s{S_B}, {WS_AO}
    """)
    for w in range(4):
        for r in range(9): A(f'ds_read_b32 v{C+9*w+r}, v{AD + 2*(w >> 1)} offset:{(w & 1)*NQ*9*256 + r*256}')
        if w: A('s_waitcnt lgkmcnt(0)')
        if w:
            for r in range(9): A(f'v_add_f32 v{C+r}, v{C+r}, v{C+9*w+r}')
    A(f"""
    v_subrev_u32 v68, s{S_K}, v{C+8}
    v_cmp_lt_u32 vcc, s{S_L}, v68
    s_cbranch_vccz {Lk}
    v_mov_b32 v68, 1
    ds_write_b32 v{VZ}, v68 offset:{L_AF}
    {Lk}:
    v_rcp_f32 v{C+8}, v{C+8}
    """)
    for r in range(8): A(f'v_mul_f32 v{C+r}, v{C+8}, v{C+r}')
    for r in range(4): A(f'v_cvt_pk_bf16_f32 v{64+r}, v{C+2*r}, v{C+1+2*r}')
    A(f"""
    buffer_store_dwordx4 v[64:67], v{L16}, {ws}, s{S_B} offen sc1
    s_add_u32 s{S_CNT}, s{S_CNT}, 4
    s_cmp_lt_u32 s{S_CNT}, {NQ}
    s_cbranch_scc1 {Lp}
    {Ld}:
    s_waitcnt vmcnt(0) lgkmcnt(0)
    s_barrier
    ds_read_b32 v68, v{VZ} offset:{L_AF}
    s_waitcnt lgkmcnt(0)
    v_readfirstlane_b32 s{S_T}, v68
    s_barrier
    s_cmp_gt_u32 s{S_T}, s{S_ATT}
    s_cbranch_scc1 {Lre}
    s_add_u32 s{S_BAT}, s{S_BAT}, 1
    s_cmp_lt_u32 s{S_BAT}, {NT//NQ}
    s_cbranch_scc1 {Lb}
    """)
    set_fo(A)

def phase_a3(A, bail):
    OB, D, PK = 8, 40, 56
    srd(A, S_X, P_AWO, 512*1024)
    srd(A, S_Y, P_OUT, 2048*2048)
    A(f"""
    v_lshrrev_b32 v1, 2, v{LANE}
    v_lshlrev_b32 v1, 10, v1
    v_and_b32 v2, 3, v{LANE}
    v_lshl_add_u32 v1, v2, 4, v1
    s_lshr_b32 s{S_E}, s{S_H}, 1
    s_lshl_b32 s{S_E}, s{S_E}, 6
    s_lshl_b32 s{S_T}, s{S_WAVE}, 17
    s_add_u32 s{S_A}, s{S_E}, s{S_T}
    s_lshl_b32 s{S_M0}, s{S_WAVE}, 13
    """)
    for j in range(8):
        A(f's_add_u32 m0, s{S_M0}, {j*1024}\ns_add_u32 s{S_T}, s{S_A}, {j*16*1024}')
        A(f'buffer_load_dwordx4 v1, {sr(S_X,4)}, s{S_T} offen lds')
    A(f"""
    v_lshrrev_b32 v3, 5, v{LANE}
    v_bfe_u32 v4, v{LANE}, 2, 2
    v_lshl_add_u32 v4, v3, 2, v4
    v_lshlrev_b32 v4, 6, v4
    v_and_b32 v5, 1, v{LANE}
    v_lshl_add_u32 v4, v5, 5, v4
    v_bfe_u32 v5, v{LANE}, 4, 1
    v_lshl_add_u32 v4, v5, 4, v4
    v_bfe_u32 v5, v{LANE}, 1, 1
    v_lshl_add_u32 v4, v5, 3, v4
    v_and_b32 v5, 31, v{LANE}
    v_lshlrev_b32 v5, 11, v5
    v_lshl_add_u32 v5, v3, 5, v5
    s_waitcnt vmcnt(0)
    s_barrier
    """)
    for s in range(32):
        for q in range(2): A(f'ds_read_b64_tr_b16 {vr(4*s + 2*q, 2, "a")}, v4 offset:{s*1024 + q*512}')
    wait_fo(A, bail)
    Lp, Ld = A.label('a3'), A.label('a3d')
    A(f"""
    s_and_b32 s{S_CNT}, s{S_H}, 1
    s_lshl_b32 s{S_T}, s{S_WAVE}, 1
    s_add_u32 s{S_CNT}, s{S_CNT}, s{S_T}
    s_waitcnt lgkmcnt(0)
    {Lp}:
    s_mul_i32 s{S_SEG}, s{S_CNT}, {NA}
    s_add_u32 s{S_SEG}, s{S_SEG}, s{S_IA}
    s_cmp_ge_u32 s{S_SEG}, 64
    s_cbranch_scc1 {Ld}
    s_lshl_b32 s{S_A}, s{S_SEG}, 15
    s_add_u32 s{S_A}, s{S_A}, {WS_AO}
    """)
    def ol(s):
        x = f'buffer_load_dwordx4 {vr(OB + (s % 8)*4, 4)}, v{L16}, {ws}, s{S_A} offen offset:{(s % 4)*1024} sc1'
        return x + (f'\ns_add_u32 s{S_A}, s{S_A}, 4096' if s % 4 == 3 else '')
    for s in range(7): A(ol(s))
    for s in range(32):
        A(f's_waitcnt vmcnt({min(6, 31-s)})')
        A(mf3232(D, 4*s, OB + (s % 8)*4, None if s == 0 else D, ka='a'))
        if s + 7 < 32: A(ol(s+7))
    A(f's_lshl_b32 s{S_B}, s{S_SEG}, 16\ns_add_u32 s{S_B}, s{S_B}, s{S_E}')
    for r in range(8): A(f'v_cvt_pk_bf16_f32 v{PK+r}, v{D+2*r}, v{D+2*r+1}')
    A(f"""
    buffer_store_dwordx4 {vr(PK,4)}, v5, {sr(S_Y,4)}, s{S_B} offen
    buffer_store_dwordx4 {vr(PK+4,4)}, v5, {sr(S_Y,4)}, s{S_B} offen offset:16
    s_add_u32 s{S_CNT}, s{S_CNT}, 8
    s_branch {Lp}
    {Ld}:
    s_barrier
    """)

def phase_b2(A, bail, stamp):
    QR, KR, VR, KM, KVM, VN = 0, 32, 64, 72, 88, 112
    S00, S01, S11, SM0, SM1 = 128, 132, 136, 140, 144
    P0, P1, PM, ONE, LL, OO, PK = 148, 152, 156, 164, 168, 176, 192
    ACC = 128
    AQW, AQR, APS, APL, AOS, MSK, T0, T1, SEL, AX, AE, AEW = 92, 93, 94, 95, 96, 97, 98, 99, 100, 108, 109, 110
    L_KX = XBUF; L_E = L_KX + 8192; L_K = L_E + 8192
    S_TAG = S_L
    Lq, Lj = A.label('fq'), A.label('fj')
    A(f's_cmp_ge_u32 s{S_I}, {NB}\ns_cbranch_scc1 {Lq}')
    load_qkv(A, 'Q')
    A(f's_branch {Lj}\n{Lq}:')
    load_qkv(A, 'Q', claim=True)
    A(f'{Lj}:')
    srd(A, S_Y, P_OUT, 2048*2048)
    A(f"""
    v_lshrrev_b32 v1, 4, v{LANE}               ; g
    v_and_b32 v2, 15, v{LANE}                  ; n
    v_lshlrev_b32 v3, 10, v1
    v_lshl_add_u32 v3, v2, 4, v3
    s_lshl_b32 s{S_T}, s{S_WAVE}, 8
    s_add_u32 s{S_A}, s{S_HWO}, s{S_T}
    s_lshl_b32 s{S_M0}, s{S_WAVE}, 15
    """)
    for j in range(32):
        A(f's_add_u32 m0, s{S_M0}, {j*1024}\ns_add_u32 s{S_T}, s{S_A}, {j*4096}')
        A(f'buffer_load_dwordx4 v3, {sr(S_WO,4)}, s{S_T} offen lds')
    srd(A, S_X, P_BX, 0x200000)
    A(f"""
    v_mov_b32 v{APL}, v3
    v_lshrrev_b32 v4, 2, v{LANE}
    v_lshlrev_b32 v4, 8, v4
    v_and_b32 v5, 3, v{LANE}
    v_lshl_add_u32 v4, v5, 6, v4
    v_add_u32 v4, s{S_M0}, v4                  ; (4g+r)*256 + a*64
    s_lshl_b32 s{S_T}, s{S_WAVE}, 9
    s_add_u32 s{S_T}, s{S_T}, {L_K}
    v_lshlrev_b32 v{AQW}, 7, v1
    v_lshl_add_u32 v{AQW}, v2, 2, v{AQW}
    v_add_u32 v{AQW}, s{S_T}, v{AQW}
    v_lshrrev_b32 v6, 2, v2
    v_and_b32 v7, 1, v2
    v_lshl_add_u32 v6, v6, 1, v7               ; m
    v_lshlrev_b32 v{AQR}, 6, v6
    v_lshl_add_u32 v{AQR}, v1, 4, v{AQR}
    v_add_u32 v{AQR}, {L_K}, v{AQR}
    v_lshlrev_b32 v{APS}, 17, v1
    v_lshl_add_u32 v{APS}, v2, 4, v{APS}
    v_lshlrev_b32 v{AOS}, 6, v1
    v_lshl_add_u32 v{AOS}, v2, 3, v{AOS}
    v_lshlrev_b32 v6, 2, v1
    v_sub_u32 v{MSK}, v2, v6
    v_mul_u32_u24 v{AX}, {XST}, v2
    v_lshl_add_u32 v{AX}, v1, 4, v{AX}
    s_lshl_b32 s{S_T}, s{S_WAVE}, 10
    v_add_u32 v{AEW}, s{S_T}, v{L16}
    v_lshrrev_b32 v6, 1, v2
    v_mov_b32 v8, 0x3f80
    v_lshlrev_b32 v7, 4, v7
    v_lshlrev_b32 v8, v7, v8
    s_mov_b32 s{S_EXA}, 0x00ff00ff
    s_mov_b32 s{S_EXA+1}, 0x00ff00ff
    """)
    for d in range(4): A(f'v_cmp_eq_u32 vcc, {d}, v6\nv_cndmask_b32 v{SEL+d}, v{VZ}, v8, vcc')
    for kk in range(4):
        A(f's_waitcnt vmcnt({24 - 8*kk})')
        for T in range(8):
            for t in range(2):
                A(f'ds_read_b64_tr_b16 {vr((T*4 + kk)*4 + 2*t, 2, "a")}, v4 offset:{(32*kk + 16*t)*256 + T*8}')
    def fetch(sseg):
        A(f"""
        s_lshl_b32 s{S_A}, s{sseg}, 15
        s_lshl_b32 s{S_T}, s{S_WAVE}, 13
        s_add_u32 s{S_A}, s{S_A}, s{S_T}
        s_mul_i32 s{S_M0}, s{S_WAVE}, {8*XST}
        """)
        for r in range(8):
            A(f's_add_u32 m0, s{S_M0}, {r*XST}\ns_add_u32 s{S_T}, s{S_A}, {r*1024}\nbuffer_load_dwordx4 v{L16}, {sr(S_X,4)}, s{S_T} offen lds')
        A(f"""
        s_lshl_b32 s{S_A}, s{sseg}, 5
        s_add_u32 s{S_A}, s{S_A}, s{S_H}
        s_lshl_b32 s{S_A}, s{S_A}, 14
        s_lshl_b32 s{S_T}, s{S_WAVE}, 11
        s_add_u32 s{S_A}, s{S_A}, s{S_T}
        s_add_u32 m0, s{S_T}, {L_KX}
        s_cmp_lt_u32 s{sseg}, 64
        s_cselect_b32 s{S_A}, s{S_A}, 0x7ff00000
        buffer_load_dwordx4 v{L16}, {ws}, s{S_A} offen sc1 lds
        buffer_load_dwordx4 v{L16}, {ws}, s{S_A} offen offset:1024 sc1 lds
        s_add_u32 s{S_A}, s{S_A}, 8192
        buffer_load_dwordx4 {vr(VN,4)}, v{L16}, {ws}, s{S_A} offen sc1
        buffer_load_dwordx4 {vr(VN+4,4)}, v{L16}, {ws}, s{S_A} offen offset:1024 sc1
        """)
    A(f'v_and_b32 v2, 7, v{LANE}\nv_lshlrev_b32 v2, 2, v2')
    spin(A, 'init', f'global_load_dword v{VT}, v2, {sr(P_DBG,2)} offset:{DBG_BM} sc1', f'v_cmp_ne_u32 vcc, -1, v{VT}', bail, nap=16)
    def wait_f1(sseg):
        A(f's_lshl_b32 s{S_A}, s{sseg}, 2\ns_add_u32 s{S_A}, s{S_A}, s{S_HOFF}\ns_add_u32 s{S_A}, s{S_A}, {WS_F1}')
        spin(A, 'f1', f'buffer_load_dword v{VT}, v{VZ}, {ws}, s{S_A} offen sc1', f'v_cmp_ne_u32 vcc, 1, v{VT}', bail, nap=8)
    A(f"""
    s_xor_b32 s{S_SEG}, s{S_I}, 2
    s_cmp_lt_u32 s{S_I}, {NB}
    s_cselect_b32 s{S_T}, {SEG4}, 0
    s_add_u32 s{S_SEG}, s{S_SEG}, s{S_T}
    s_mov_b32 s{S_CNT}, 0
    """)
    wait_f1(S_SEG)
    A('s_waitcnt lgkmcnt(0)\ns_barrier')
    fetch(S_SEG)
    A(f'global_load_dword v{VT}, v{VZ}, {sr(P_DBG,2)} offset:{DBG_FOREIGN} sc1')
    for i in range(4): A(f'v_mov_b32 v{8+i}, -1')
    A(f's_waitcnt vmcnt(0)\nv_cmp_ne_u32 vcc, 0, v{VT}\ns_cbranch_vccnz W_b2far')
    def loop(st):
        inbox_init(A, 8, st)
        A('s_waitcnt vmcnt(0)\ns_barrier')
        set_fo(A, WS_FF)
        wait_fo(A, bail)
        stamp(4)
        Lp = A.label('b2')
        A(f"""
        {Lp}:
        s_barrier
        s_lshl_b32 s{S_B}, s{S_SEG}, 5
        s_add_u32 s{S_B}, s{S_B}, s{S_H}
        s_lshl_b32 s{S_T}, s{S_WAVE}, 10
        s_lshl_b32 s{S_B}, s{S_B}, 12
        s_add_u32 s{S_B}, s{S_B}, s{S_T}
        s_add_u32 s{S_B}, s{S_B}, {WS_KVM}
        """)
        XB, QA = 192, 128
        xr = lambda j: dsr(XB + (j % 8)*4, AX, (j & 1)*16*XST + 64*(j >> 1))
        for j in range(6): A(xr(j))
        for j in range(32):
            A(f's_waitcnt lgkmcnt({min(5, 31-j)})')
            for t in range(2):
                d = QA + (t*2 + (j & 1))*4
                A(mfk(d, WB('Q', t, j >> 1), ('v', XB + (j % 8)*4), None if j < 2 else d))
                if t == 0 and j + 6 < 32: A(xr(j+6))
                if t == 1 and j < 8: A(f'v_mov_b32 v{VR+j}, v{VN+j}')
                if t == 1 and j == 24: A(f'buffer_load_dwordx4 {vr(KVM,4)}, v{L16}, {ws}, s{S_B} offen sc1')
        for z in range(8): A(dsr(KR+4*z, L16, L_KX + z*1024))
        for kt in range(2):
            for r in range(4): A(f'v_cvt_pk_bf16_f32 v{PK+4*kt+r}, v{QA+kt*4+r}, v{QA+8+kt*4+r}')
            A(f'ds_write_b128 v{AEW}, {vr(PK+4*kt,4)} offset:{L_E + kt*4096}')
        for r in range(4): A(f'v_mov_b32 v{ONE+r}, 0x3f803f80')
        for r in (P0+2, P0+3, PM+1, PM+2, PM+5, PM+6): A(f'v_mov_b32 v{r}, 0')
        A(f'v_mov_b32 v{T1}, 0xff800000\ns_waitcnt lgkmcnt(0)\ns_barrier')
        for z in range(8): A(dsr(QR+4*z, L16, L_E + z*1024))
        for i, (d, kt, qt) in enumerate(((S00, 0, 0), (S11, 1, 1), (S01, 0, 1))):
            if i < 2: A(f's_waitcnt lgkmcnt({4 - 4*i})')
            for kk in range(4): A(mf32(d, KR+16*kt+4*kk, QR+16*qt+4*kk, None if kk == 0 else d))
        for r in range(4):
            A(f'v_cmp_le_i32 vcc, {r}, v{MSK}')
            A(f'v_cndmask_b32 v{S00+r}, v{T1}, v{S00+r}, vcc\nv_cndmask_b32 v{S11+r}, v{T1}, v{S11+r}, vcc')
        Lw = A.label('b2w')
        A(f"""
        {Lw}:
        s_waitcnt vmcnt(0)
        v_max3_u32 v{T0}, v{KVM}, v{KVM+1}, v{KVM+2}
        v_max_u32 v{T0}, v{T0}, v{KVM+3}
        v_cmp_eq_u32 vcc, -1, v{T0}
        s_cbranch_vccz {Lw}_ok
        buffer_load_dwordx4 {vr(KVM,4)}, v{L16}, {ws}, s{S_B} offen sc1
        s_sub_u32 s{S_BUD}, s{S_BUD}, 1
        s_cbranch_scc0 {Lw}
        s_branch {bail}
        {Lw}_ok:
        ds_write2_b32 v{AQW}, v{KVM}, v{KVM+1} offset0:0 offset1:16
        s_cmp_lt_u32 s{S_SEG}, {SEG4}
        s_cselect_b32 s{S_G}, 2, 4
        s_add_u32 s{S_G}, s{S_G}, s{S_SEG}
        s_waitcnt lgkmcnt(0)
        s_barrier
        """)
        for kk in range(4): A(dsr(KM+4*kk, AQR, kk*512))
        Lnf = A.label('b2nf')
        A(f's_cmp_ge_u32 s{S_G}, 64\ns_cbranch_scc1 {Lnf}')
        wait_f1(S_G)
        fetch(S_G)
        A(f'{Lnf}:')
        for kk in range(4):
            A(f's_waitcnt lgkmcnt({3-kk})')
            A(mf32(SM0, KM+4*kk, QR+4*kk, None if kk == 0 else SM0)); A(mf32(SM1, KM+4*kk, QR+16+4*kk, None if kk == 0 else SM1))
        for qt, xs, sm, P in ((0, [S00+r for r in range(4)], SM0, P0), (1, [S01+r for r in range(4)] + [S11+r for r in range(4)], SM1, P1)):
            A(f'v_mul_f32 v{sm}, s{S_C}, v{sm}\nv_mul_f32 v{sm+1}, s{S_C}, v{sm+1}\nv_max_f32 v{T0}, v{sm}, v{sm+1}')
            for k in range(0, len(xs), 2): A(f'v_max3_f32 v{T0}, v{T0}, v{xs[k]}, v{xs[k+1]}')
            for sw in ('32', '16'):
                A(f'v_mov_b32 v{T1}, v{T0}\nv_permlane{sw}_swap_b32 v{T1}, v{T0}\nv_max_f32 v{T0}, v{T0}, v{T1}')
            for x in xs + [sm, sm+1]: A(f'v_sub_f32 v{x}, v{x}, v{T0}')
            for x in xs + [sm, sm+1]: A(f'v_exp_f32 v{x}, v{x}')
            for k in range(0, len(xs), 2): A(f'v_cvt_pk_bf16_f32 v{P+k//2}, v{xs[k]}, v{xs[k+1]}')
            A(f'v_cvt_pk_bf16_f32 v{PM+4*qt}, v{sm}, v{sm+1}\nv_cvt_pk_bf16_f32 v{PM+4*qt+3}, v{sm}, v{sm+1}')
            A(mf32(LL+4*qt, ONE, P, None)); A(mf32(OO+8*qt, VR, P, None)); A(mf32(OO+8*qt+4, VR+4, P, None))
            A(mf16(LL+4*qt, ONE, PM+4*qt, LL+4*qt)); A(mf16(OO+8*qt, KVM+2, PM+4*qt, OO+8*qt)); A(mf16(OO+8*qt+4, KVM+2, PM+4*qt+2, OO+8*qt+4))
        for qt in range(2):
            A(f'v_rcp_f32 v{T0}, v{LL+4*qt}')
            for r in range(8): A(f'v_mul_f32 v{OO+8*qt+r}, v{T0}, v{OO+8*qt+r}')
            for r in range(4): A(f'v_cvt_pk_bf16_f32 v{PK+4*qt+r}, v{OO+8*qt+2*r}, v{OO+8*qt+2*r+1}')
            A(f'ds_write_b128 v{AEW}, {vr(PK+4*qt,4)} offset:{L_E + qt*4096}')
        A(f"""
        s_and_b32 s{S_D}, s{S_CNT}, 1
        s_lshl_b32 s{S_T}, s{S_I}, 1
        s_add_u32 s{S_D}, s{S_D}, s{S_T}
        s_lshl_b32 s{S_D}, s{S_D}, 20
        s_add_u32 s{S_D}, s{S_D}, {WS_FP}
        s_lshl_b32 s{S_T}, s{S_WAVE}, 8
        s_add_u32 s{S_D}, s{S_D}, s{S_T}
        s_lshl_b32 s{S_T}, s{S_H}, 10
        s_add_u32 s{S_E}, s{S_D}, s{S_T}
        s_lshl_b32 s{S_T}, s{S_H}, 15
        s_add_u32 s{S_D}, s{S_D}, s{S_T}
        s_bfe_u32 s{S_TAG}, s{S_CNT}, 0x10001
        s_waitcnt lgkmcnt(0)
        s_barrier
        """)
        for z in range(8): A(dsr(QR+4*z, L16, L_E + z*1024))
        def out(kt):
            o = []
            for r in range(4):
                p = KR + (kt*4 + r)*4
                for tp in range(4): o.append(f'v_cvt_pk_bf16_f32 v{p+tp}, v{ACC+(kt*8+2*tp)*4+r}, v{ACC+(kt*8+2*tp+1)*4+r}')
                o.append(f'v_and_or_b32 v{p+3}, v{p+3}, -2, s{S_TAG}')
                o.append(f's_add_u32 s{S_T}, s{S_E}, {(16*kt + r)*32768}\nbuffer_store_dwordx4 {vr(p,4)}, v{APS}, {ws}, s{S_T} offen {st}')
            return o
        for kt in range(2):
            A(f's_waitcnt lgkmcnt({4*(1-kt)})')
            ms = [mfk(ACC + (kt*8 + T)*4, ('v', QR+16*kt+4*kk), ('a', (T*4+kk)*4), None if kk == 0 else ACC + (kt*8 + T)*4) for kk in range(4) for T in range(8)]
            A.weave(ms, {7+i: [x] for i, x in enumerate(out(0))} if kt else {})
        for x in out(1): A(x)
        A(f"""
        s_lshl_b32 s{S_B}, s{S_SEG}, 5
        s_add_u32 s{S_B}, s{S_B}, s{S_H}
        s_lshl_b32 s{S_B}, s{S_B}, 11
        s_lshl_b32 s{S_T}, s{S_WAVE}, 8
        s_add_u32 s{S_B}, s{S_B}, s{S_T}
        s_waitcnt vmcnt(0)
        """)
        Lr = A.label('b2r')
        A(f'{Lr}:\ns_mov_b32 s{S_A}, s{S_D}')
        for p in range(8):
            A(f'buffer_load_dwordx4 {vr(QR+4*p,4)}, v{APL}, {ws}, s{S_A} offen sc1\ns_add_u32 s{S_A}, s{S_A}, 4096')
        A(f's_sub_u32 s{S_BUD}, s{S_BUD}, 1\ns_cbranch_scc1 {bail}')
        for p in range(8):
            A(f's_waitcnt vmcnt({7-p})'); A(mf32(ACC, QR+4*p, SEL, None if p == 0 else ACC))
            A(f'v_xor_b32 v{T0}, s{S_TAG}, v{QR+3}' if p == 0 else f'v_bitop3_b32 v{T0}, s{S_TAG}, v{QR+4*p+3}, v{T0} bitop3:0xbe')
        A(f"""
        v_and_b32 v{T0}, 1, v{T0}
        v_cmp_ne_u32 vcc, 0, v{T0}
        s_cbranch_vccnz {Lr}
        v_cvt_pk_bf16_f32 v{ACC}, v{ACC}, v{ACC+1}
        v_cvt_pk_bf16_f32 v{ACC+1}, v{ACC+2}, v{ACC+3}
        s_mov_b64 exec, {sr(S_EXA,2)}
        buffer_store_dwordx2 {vr(ACC,2)}, v{AOS}, {sr(S_Y,4)}, s{S_B} offen offset:1024
        s_mov_b64 exec, -1
        s_add_u32 s{S_CNT}, s{S_CNT}, 1
        s_mov_b32 s{S_SEG}, s{S_G}
        s_cmp_lt_u32 s{S_SEG}, 64
        s_cbranch_scc1 {Lp}
        """)

    loop('')
    stamp(5)
    A('s_endpgm\nW_b2far:')
    loop('sc1')

def worker(A, opt):
    bail = 'W_bail'
    OPT.clear(); OPT.update(opt)
    A(f"""
    v_and_b32 v{LANE}, 63, v0
    v_lshlrev_b32 v{L16}, 4, v{LANE}
    v_mov_b32 v{VZ}, 0
    s_mov_b32 s{S_C}, 0x3e0293ee               ; 128^-0.5 * log2(e)
    s_mov_b32 s{S_BUD}, 400000
    s_lshl_b32 s{S_HOFF}, s{S_H}, 8
    s_lshl_b32 s{S_HWO}, s{S_H}, 17
    """)
    for s, p in ((S_WQ, P_WQ), (S_WK, P_WK), (S_WV, P_WV), (S_WO, P_WO)): srd(A, s, p, 0x400000)
    st = opt.get('wstamp')
    def stamp(k):
        if st:
            A(f"""
            s_memrealtime s[98:99]
            s_memtime s[90:91]
            s_mul_i32 s96, s{S_H}, 7
            s_add_u32 s96, s96, s{S_I}
            s_lshl_b32 s96, s96, 6
            s_add_u32 s96, s96, {WS_STAT + 0x8000 + 4*k}
            s_waitcnt lgkmcnt(0)
            v_mov_b32 v{VT}, s98
            buffer_store_dword v{VT}, v{VZ}, {ws}, s96 offen
            v_mov_b32 v{VT}, s90
            buffer_store_dword v{VT}, v{VZ}, {ws}, s96 offen offset:32
            s_waitcnt vmcnt(0)
            """)
    def first():
        if st: A(f's_sub_u32 s96, s96, 4\nv_mov_b32 v{VT}, s100\nbuffer_store_dword v{VT}, v{VZ}, {ws}, s96 offen\nv_mov_b32 v{VT}, s62\nbuffer_store_dword v{VT}, v{VZ}, {ws}, s96 offen offset:32')
    srd(A, S_X, P_BX, 0x200000)
    A(f's_cmp_ge_u32 s{S_I}, {NB+NF}\ns_cbranch_scc1 W_a\ns_cmp_ge_u32 s{S_I}, {NB}\ns_cbranch_scc1 W_b2')
    load_qkv(A, 'KV', claim=True); stamp(1); first()
    phase_b1(A, bail); stamp(2); stamp(3)
    A('W_b2:')
    phase_b2(A, bail, stamp); stamp(5)
    A(f'{bail}:\ns_endpgm\nW_a:')
    prefetch(A)
    phase_a1(A, bail); stamp(1); first()
    phase_a2(A, bail); stamp(2)
    phase_a3(A, bail); stamp(3)
    A('s_endpgm')
```

```python
import sys
from common import *
import chain, worker
from chain import *
NAME = 'concat_heads__mha_block__memory_aug_recurrent_mem_tr__prompt_kernel'
HEADER = open('concat_heads__mha_block__memory_aug_recurrent_mem_tr__prompt.s.ref').read().split('; Override launch')[0]

def build(opt, name=NAME, aslist=False):
    A = Asm()
    A(f'; @launch {"kernel=" + name + " " if aslist else ""}grid=(256,1,1) block=(256,1,1) lds=163840')
    A(f'.amdgcn_target "amdgcn-amd-amdhsa--gfx950"\n.text\n.globl {name}\n.p2align 8\n.type {name},@function\n{name}:')
    if opt.get('stamp'): A('s_memtime s[62:63]\ns_memrealtime s[100:101]')
    dbg = sr(P_DBG, 2)
    A(f'''
    s_cmp_ge_u32 s2, 256
    s_cbranch_scc1 L_exit
    s_load_dwordx16 s[64:79], s[0:1], 0
    s_load_dwordx8 s[80:87], s[0:1], 64
    s_load_dwordx2 s[88:89], s[0:1], 96
    s_getreg_b32 s{S_XCC}, hwreg(HW_REG_XCC_ID, 0, 3)
    s_getreg_b32 s18, hwreg(HW_REG_HW_ID, 13, 2)
    s_getreg_b32 s19, hwreg(HW_REG_HW_ID, 8, 3)
    v_lshrrev_b32 v1, 6, v0
    s_lshl_b32 s{S_SLOT}, s{S_XCC}, 2
    v_readfirstlane_b32 s{S_WAVE}, v1
    s_add_u32 s{S_SLOT}, s{S_SLOT}, s18
    s_lshl_b32 s{S_SLOT}, s{S_SLOT}, 3
    s_add_u32 s{S_SLOT}, s{S_SLOT}, s19
    {opt.get('slothack', '')}
    s_mov_b32 s{S_LOSTF}, 0
    v_mov_b32 v2, 0
    v_and_b32 v5, 31, v0
    v_lshlrev_b32 v5, 2, v5
    s_lshl_b32 s16, s2, 7
    s_add_u32 s16, s16, {WS_FLAG}
    s_cmp_eq_u32 s{S_WAVE}, 0
    s_cselect_b32 s16, s16, 0x7ff00000
    s_waitcnt lgkmcnt(0)
    ''')
    srd(A, S_WS, P_WSP, WS_SIZE)
    A(f'''
    buffer_store_dword v2, v5, {sr(S_WS,4)}, s16 offen sc1
    L_role:
    s_mov_b32 s{S_H}, s{S_SLOT}
    s_cmp_lt_u32 s{S_H}, 32
    s_cbranch_scc1 L_chain
    s_lshr_b32 s18, s{S_H}, 5
    s_lshl_b32 s18, s18, 2
    s_lshr_b32 s18, {opt.get('setmap', 0x65432100):#x}, s18
    s_and_b32 s18, s18, 7
    s_and_b32 s{S_H}, s{S_H}, 31
    s_branch L_worker
    L_exit:
    s_endpgm
    L_lost:
    s_waitcnt vmcnt(0) lgkmcnt(0)
    s_barrier
    v_mbcnt_lo_u32_b32 v0, -1, 0
    v_mbcnt_hi_u32_b32 v0, -1, v0
    v_mov_b32 v2, 0
    s_cmp_lg_u32 s{S_WAVE}, 0
    s_cbranch_scc1 L_lost_j
    v_mov_b32 v3, 1
    s_lshl_b32 s16, s{S_XCC}, 2
    v_mov_b32 v4, s16
    s_cmp_lg_u32 s{S_LOSTF}, 0
    s_cbranch_scc1 L_lost_p
    s_mov_b64 exec, 1
    global_atomic_add v4, v3, {dbg} offset:{DBG_LOST} sc1
    s_mov_b64 exec, -1
    L_lost_p:
    v_and_b32 v5, 7, v0
    v_add_u32 v5, s{S_XCC}, v5
    v_and_b32 v5, 7, v5
    v_lshlrev_b32 v6, 2, v5
    global_load_dword v7, v6, {dbg} offset:{DBG_BM} sc1
    global_load_dword v8, v6, {dbg} offset:{DBG_LOST} sc1
    global_load_dword v9, v6, {dbg} offset:{DBG_RES} sc1
    s_mov_b32 s{S_SLOT}, 256
    s_sub_u32 s{S_BUD}, s{S_BUD}, 1
    s_cbranch_scc1 L_lost_w
    s_waitcnt vmcnt(0)
    v_bcnt_u32_b32 v8, v7, v8
    v_or_b32 v7, v7, v9
    v_cmp_ne_u32 vcc, -1, v7
    s_mov_b32 s16, 0
    ''')
    for l in range(8): A(f'v_readlane_b32 s18, v8, {7-l}\ns_add_u32 s16, s16, s18')
    A(f'''
    s_and_b32 s19, vcc_lo, 0xff
    s_cbranch_scc0 L_lost_w
    s_cmp_ge_u32 s16, 256
    s_cbranch_scc1 L_lost_t
    s_cmp_lt_u32 s18, 32
    s_cbranch_scc1 L_lost_p
    s_bitcmp0_b32 s19, 0
    s_cbranch_scc1 L_lost_p
    L_lost_t:
    s_ff1_i32_b32 s19, s19
    s_nop 3
    v_readlane_b32 s16, v7, s19
    v_readlane_b32 s18, v5, s19
    s_not_b32 s16, s16
    s_ff1_i32_b32 s16, s16
    s_lshl_b32 s{S_SLOT}, s18, 5
    s_add_u32 s{S_SLOT}, s{S_SLOT}, s16
    s_lshl_b32 s19, s18, 2
    s_add_u32 s19, s19, {DBG_RES}
    s_lshl_b32 s{S_CLM}, 1, s16
    s_atomic_or s{S_CLM}, {dbg}, s19 glc
    s_waitcnt lgkmcnt(0)
    s_bitcmp1_b32 s{S_CLM}, s16
    s_cbranch_scc1 L_lost_p
    s_cmp_eq_u32 s{S_XCC}, s18
    s_cbranch_scc1 L_lost_w
    global_store_dword v2, v3, {dbg} offset:{DBG_FOREIGN} sc1
    s_waitcnt vmcnt(0)
    L_lost_w:
    v_mov_b32 v4, s{S_SLOT}
    ds_write_b32 v2, v4
    s_waitcnt lgkmcnt(0)
    L_lost_j:
    s_barrier
    ds_read_b32 v4, v2
    s_lshl_b32 s16, s{S_WAVE}, 6
    v_add_u32 v0, s16, v0
    s_mov_b32 s{S_LOSTF}, 1
    s_waitcnt lgkmcnt(0)
    v_readfirstlane_b32 s{S_SLOT}, v4
    s_barrier
    s_cmp_lt_u32 s{S_SLOT}, 256
    s_cbranch_scc1 L_role
    s_endpgm
    L_chain:
    ''')
    for w in range(1, 4):
        A(f's_cmp_eq_u32 s{S_WAVE}, {w}\ns_cbranch_scc1 C{w}_entry')
    for w in range(4):
        A(f'C{w}_entry:')
        chain_wave(A, w, opt)
    A('L_worker:')
    worker.worker(A, opt)
    out, n = hazard.fix(A.lines, verbose=opt.get('verbose'))
    return HEADER + '\n'.join(out) + KERNEL_TAIL.format(name=name)

if __name__ == '__main__':
    opt = eval(sys.argv[2]) if len(sys.argv) > 2 else {}
    open(sys.argv[1], 'w').write(build(opt))
```
